```python
import torch

def _softmax(x, axis=-1):
    return torch.softmax(x, dim=axis)
def _gelu(x):
    return torch.nn.functional.gelu(x, approximate="tanh")
def _silu(x):
    return torch.nn.functional.silu(x)
def _sigmoid(x):
    return torch.sigmoid(x)
def _layernorm(x, axis=-1, eps=1e-5):
    m = x.mean(dim=axis, keepdim=True)
    v = x.var(dim=axis, keepdim=True, unbiased=False)
    return (x - m) / torch.sqrt(v + eps)
def _scatter_add(tgt, idx, src, axis=0):
    return tgt.clone().index_add_(axis, idx, src)
def _segment_sum(src, seg, n):
    out = torch.zeros((n,) + src.shape[1:], dtype=src.dtype)
    return out.index_add_(0, seg, src)
def _pad(x, pw):
    flat = tuple(v for pair in reversed(pw) for v in pair)
    return torch.nn.functional.pad(x, flat)

kernel_name = 'sequential_preLN__ssm_conv_s4d__mixer_s_mlp__prompt'

def setup_inputs():

    _w = (lambda a: (lambda t: t.to(torch.bfloat16) if t.is_floating_point() else t)(torch.as_tensor(a)))
    def _A_setup():
        Bsz, L, D, N = 1, 2048, 640, 128
        return {
            "u": _w((lambda *s: torch.randn(*s, dtype=torch.bfloat16) * 0.05)(Bsz, L, D)),
            "log_A_real": _w((lambda *s: torch.randn(*s, dtype=torch.bfloat16) * 6.4)(D, N) * 0.5),
            "A_imag": _w((lambda *s: torch.randn(*s, dtype=torch.bfloat16) * 0.05)(D, N) * 3.14),
            "C_real": _w((lambda *s: torch.randn(*s, dtype=torch.bfloat16) * 0.05)(D, N) / N ** 0.5),
            "C_imag": _w((lambda *s: torch.randn(*s, dtype=torch.bfloat16) * 0.05)(D, N) / N ** 0.5),
            "log_dt": _w((lambda *s: torch.randn(*s, dtype=torch.bfloat16) * 0.05)(D) * 0.5 - 4.0),
            "D_skip": _w((lambda *s: torch.randn(*s, dtype=torch.bfloat16) * 0.05)(D)),
        }
    _A_in = _A_setup()

    def _B_setup():
        B, S, D, F = 1, 2048, 640, 1728
        return {
            "x":  _w((lambda *s: torch.randn(*s, dtype=torch.bfloat16) * 0.05)(B, S, D)),
            "w1": _w((lambda *s: torch.randn(*s, dtype=torch.bfloat16) * 6.4)(D, D) * (D ** -0.5)),
            "w2": _w((lambda *s: torch.randn(*s, dtype=torch.bfloat16) * 6.4)(D, D) * (D ** -0.5)),
            "w3": _w((lambda *s: torch.randn(*s, dtype=torch.bfloat16) * 6.4)(D, F) * (D ** -0.5)),
            "w4": _w((lambda *s: torch.randn(*s, dtype=torch.bfloat16) * 6.4)(F, D) * (F ** -0.5)),
        }
    _B_in = _B_setup()

    return {
        "A_u": _A_in["u"],
        "A_log_A_real": _A_in["log_A_real"],
        "A_A_imag": _A_in["A_imag"],
        "A_C_real": _A_in["C_real"],
        "A_C_imag": _A_in["C_imag"],
        "A_log_dt": _A_in["log_dt"],
        "A_D_skip": _A_in["D_skip"],
        "B_x": _B_in["x"],
        "B_w1": _B_in["w1"],
        "B_w2": _B_in["w2"],
        "B_w3": _B_in["w3"],
        "B_w4": _B_in["w4"],
    }

def reference(A_u, A_log_A_real, A_A_imag, A_C_real, A_C_imag, A_log_dt, A_D_skip, B_x, B_w1, B_w2, B_w3, B_w4):
    def _A_ref(u, log_A_real, A_imag, C_real, C_imag, log_dt, D_skip):
        L = u.shape[1]
        dt = torch.exp(log_dt)
        A = -torch.exp(log_A_real) + 1j * A_imag
        C = (C_real + 1j * C_imag) * dt[:, None]
        pos = (lambda x, dt: x.to(dt))(torch.arange(L), log_dt.dtype)
        P = torch.exp((A * dt[:, None])[:, :, None] * pos[None, None, :])
        K = 2.0 * torch.einsum("dn,dnl->dl", C, P).real
        L2 = 2 * L
        u_t = (lambda x, *d: x.permute(*d))(u, 0, 2, 1)
        Kf = (lambda x, *a, **k: torch.fft.rfft(x.float(), *a, **k))(K, L2)
        Uf = (lambda x, *a, **k: torch.fft.rfft(x.float(), *a, **k))(u_t, L2)
        y = (lambda x, *a, **k: torch.fft.irfft(x, *a, **k).to(torch.bfloat16))(Uf * Kf[None, :, :], L2)[:, :, :L]
        y = (lambda x, *d: x.permute(*d))(y, 0, 2, 1)
        return y + u * D_skip[None, None, :]

    def _B_ref(x, w1, w2, w3, w4):
        B, S, D = x.shape
        h = _gelu(_layernorm(x, axis=-1) @ w1)
        c = D // 4
        g0 = _pad(h[:, :, 0*c:1*c], ((0, 0), (1, 0), (0, 0)))[:, :S, :]
        g1 = _pad(h[:, :, 1*c:2*c], ((0, 0), (0, 1), (0, 0)))[:, 1:, :]
        g2 = _pad(h[:, :, 2*c:3*c], ((0, 0), (2, 0), (0, 0)))[:, :S, :]
        g3 = _pad(h[:, :, 3*c:   ], ((0, 0), (0, 2), (0, 0)))[:, 2:, :]
        hs = torch.concatenate([g0, g1, g2, g3], axis=-1) @ w2
        x1 = x + hs
        h2 = _gelu(_layernorm(x1, axis=-1) @ w3) @ w4
        return x1 + h2

    x = A_u
    h = x + _A_ref(_layernorm(x, axis=-1), A_log_A_real, A_A_imag, A_C_real, A_C_imag, A_log_dt, A_D_skip)
    h2 = h + _B_ref(_layernorm(h, axis=-1), B_w1, B_w2, B_w3, B_w4)
    return h2
```

```python
import re, struct

TRANS = ('v_exp_', 'v_log_', 'v_rcp_', 'v_rsq_', 'v_sqrt_', 'v_sin_', 'v_cos_')

def f2u(x):
    return struct.unpack('<I', struct.pack('<f', x))[0]

def hexf(x):
    return '0x%08x' % f2u(x)

_reg_re = re.compile(r'^-?\|?([vsa])(\d+)\|?$')
_rng_re = re.compile(r'^-?\|?([vsa])\[(\d+):(\d+)\]\|?$')

def regs_of(op):
    op = op.strip()
    m = _reg_re.match(op)
    if m: return [(m.group(1), int(m.group(2)))]
    m = _rng_re.match(op)
    if m: return [(m.group(1), i) for i in range(int(m.group(2)), int(m.group(3)) + 1)]
    if op in ('vcc', 'vcc_lo', 'vcc_hi'): return [('vcc', 0)]
    if op == 'm0': return [('m0', 0)]
    if op in ('exec', 'exec_lo', 'exec_hi'): return [('exec', 0)]
    return []

class Ins:
    def __init__(self, text):
        self.text = text
        t = text.split(';')[0].strip()
        parts = t.split(None, 1)
        self.op = parts[0]
        rest = parts[1] if len(parts) > 1 else ''
        ops = []; cur = ''; depth = 0
        for ch in rest:
            if ch in '[(': depth += 1
            if ch in '])': depth -= 1
            if ch == ',' and depth == 0: ops.append(cur.strip()); cur = ''
            else: cur += ch
        if cur.strip(): ops.append(cur.strip())
        mods = ''
        if ops:
            sp = ops[-1].split(None, 1)
            if len(sp) > 1: ops[-1] = sp[0]; mods = sp[1]
            elif not regs_of(ops[-1]) and ':' in ops[-1] and not ops[-1].startswith(('v[', 's[', 'a[')): mods = ops.pop()
        self.ops = ops; self.mods = mods
        op = self.op
        self.is_mfma = op.startswith('v_mfma')
        self.is_valu = op.startswith('v_') and not self.is_mfma
        self.is_trans = op.startswith(TRANS)
        self.is_vmem = op.startswith(('buffer_', 'global_'))
        self.is_ds = op.startswith('ds_')
        self.is_salu = op.startswith('s_')
        self.is_dpp = bool(re.search(r'quad_perm|row_|wave_', mods))
        self.is_perml = op.startswith('v_permlane')
        self.is_rdl = op.startswith(('v_readlane', 'v_readfirstlane'))
        self.is_dot = op.startswith('v_dot')
        self.lds_dma = self.is_vmem and re.search(r'\blds\b', mods) is not None
        self.addtid = 'addtid' in op
        self.moves = op.startswith(('v_fma_mixhi', 'v_fma_mixlo')) or ('dst_sel' in mods and 'dst_sel:DWORD' not in mods) or (op.startswith('v_') and 'op_sel:' in mods and not op.startswith(('v_pk', 'v_fma_mix_f32', 'v_mfma')))
        dst = []; src = []
        R = [regs_of(o) for o in ops]
        nodst = ('store' in op) or op.startswith(('ds_write', 's_cmp', 's_waitcnt', 's_nop', 's_barrier', 's_branch', 's_cbranch', 's_endpgm', 's_setprio', 's_sleep', 's_bitcmp')) or self.lds_dma
        if nodst:
            for r in R: src += r
        else:
            if R: dst += R[0]
            k = 1
            if op.startswith(('v_add_co', 'v_sub_co', 'v_addc_co', 'v_subb_co', 'v_div_scale', 'v_mad_u64')): dst += R[1]; k = 2
            if self.is_perml and 'swap' in op: dst += R[1]; src += R[0]
            for r in R[k:]: src += r
            if op.startswith(('v_fma_mixhi', 'v_fma_mixlo', 'ds_read_u16_d16', 'v_fmac', 'v_mac', 'v_dot2c', 'buffer_load_short_d16', 'v_writelane', 'v_pk_fmac')) or self.is_dpp or 'UNUSED_PRESERVE' in mods:
                src += R[0]
            if op.startswith('v_cndmask') and len(ops) == 3: src.append(('vcc', 0))
            if op.startswith('v_cmp') and not op.startswith('v_cmpx') and not R[0]: dst.append(('vcc', 0))
            if op.startswith(('s_and_saveexec', 's_or_saveexec')): dst.append(('exec', 0))
        if self.lds_dma or self.addtid: src.append(('m0', 0))
        self.dst = set(dst); self.src = set(src)
        self.passes = 0
        if self.is_mfma:
            self.passes = 8 if '32x32' in op else 4
            self.srcC = set(R[3]); self.srcAB = set(R[1] + R[2])
        self.wide_store = ('store' in op and ('x4' in op or 'x3' in op))
        self.store_data = set(R[0]) if self.wide_store else set()
        self.nops = 0
        if op == 's_nop': self.nops = int(ops[0]) + 1

def need(p, c):
    n = 0
    vg = lambda s: {r for r in s if r[0] in 'va'}
    sg = lambda s: {r for r in s if r[0] in ('s', 'vcc')}
    if p.is_valu:
        w = vg(p.dst)
        if w & c.src:
            if c.is_dpp: n = max(n, 2)
            if c.is_rdl: n = max(n, 1)
            if c.is_perml: n = max(n, 2)
            if c.is_mfma: n = max(n, 2)
            if p.is_trans and not c.is_trans: n = max(n, 1)
            if p.moves: n = max(n, 1)
            if p.is_dot and c.op != p.op: n = max(n, 3)
        if p.moves and (w & c.dst): n = max(n, 1)
        if p.is_dot and (w & c.dst) and c.op != p.op: n = max(n, 3)
        s = sg(p.dst)
        if s & c.src:
            if c.is_valu or c.is_mfma: n = max(n, 4 if c.is_rdl or c.op.startswith('v_writelane') else 2)
            if c.is_vmem: n = max(n, 5)
            if c.is_salu: n = max(n, 1)
    if p.is_mfma:
        big = 8 if p.passes == 4 else 12
        if c.is_mfma:
            if p.dst & c.srcAB: n = max(n, big)
            if p.dst & c.srcC and not (p.dst == c.srcC and p.passes == c.passes): n = max(n, big - 2)
            if (p.dst & c.dst) and not (p.dst == c.srcC): n = max(n, big)
        else:
            if p.dst & (c.src | c.dst): n = max(n, big)
            if c.is_valu and (p.srcC & c.dst): n = max(n, 3 if p.passes == 4 else 7)
    if p.is_salu and ('m0', 0) in p.dst and (c.lds_dma or c.addtid): n = max(n, 1)
    if p.wide_store and (p.store_data & c.dst): n = max(n, 2)
    return n

class Kernel:
    def __init__(self, name, grid, block, lds):
        self.name = name; self.grid = grid; self.block = block; self.lds = lds
        self.lines = []
    def __call__(self, s):
        for l in s.split('\n'):
            l = l.strip()
            if l: self.lines.append(l)
    def label(self, l): self.lines.append(l + ':')
    def fix(self):
        out = []; hist = []
        maxv = 0; maxs = 0; maxa = -1
        for l in self.lines:
            if l.endswith(':') or l.startswith((';', '.')):
                out.append(l)
                if l.endswith(':'):
                    pass
                continue
            c = Ins(l)
            for (k, i) in c.dst | c.src:
                if k == 'v': maxv = max(maxv, i)
                if k == 's': maxs = max(maxs, i)
                if k == 'a': maxa = max(maxa, i)
            req = 0
            dist = 0
            for p in reversed(hist):
                n = need(p, c)
                if n > dist: req = max(req, n - dist)
                dist += p.nops if p.nops else 1
                if dist > 14: break
            while req > 0:
                k = min(req, 16)
                ni = Ins(f's_nop {k-1}')
                out.append('    ' + ni.text); hist.append(ni); req -= k
            out.append('    ' + l); hist.append(c)
            if len(hist) > 40: hist = hist[-40:]
        self.maxv = maxv; self.maxs = maxs; self.maxa = maxa
        return out
    def text(self):
        body = self.fix()
        return f".globl {self.name}\n.p2align 8\n.type {self.name},@function\n{self.name}:\n" + '\n'.join(body) + '\n'
    def desc(self):
        nv = self.maxv + 1
        acc = (nv + 3) // 4 * 4
        if self.maxa >= 0: nv = acc + self.maxa + 1
        return f""".amdhsa_kernel {self.name}
  .amdhsa_next_free_vgpr {nv}
  .amdhsa_next_free_sgpr {min(102, max(self.maxs + 1, 16))}
  .amdhsa_accum_offset {acc}
  .amdhsa_group_segment_fixed_size 0
  .amdhsa_kernarg_size 120
  .amdhsa_user_sgpr_count 2
  .amdhsa_user_sgpr_kernarg_segment_ptr 1
  .amdhsa_system_sgpr_workgroup_id_x 1
  .amdhsa_float_denorm_mode_32 3
.end_amdhsa_kernel
"""

def assemble(kernels, header=''):
    s = header
    for k in kernels:
        s += f"; @launch kernel={k.name} grid=({k.grid},1,1) block=({k.block},1,1) lds={k.lds}\n"
    s += '.amdgcn_target "amdgcn-amd-amdhsa--gfx950"\n.text\n'
    for k in kernels: s += k.text()
    s += '.section .rodata,"a"\n.p2align 6\n'
    for k in kernels: s += k.desc()
    return s

import os
STAMP = os.environ.get('STAMP', '')
from layout import STAMP_OFF
def stamp(k, i):
    if STAMP != k.name: return
    k(f's_memtime s[{70 + 2 * i}:{71 + 2 * i}]')
    if i == 0: k('s_memrealtime s[96:97]')
def stamp_end(k, n, srd='s[24:27]'):
    if STAMP != k.name: return
    k('s_memrealtime s[98:99]')
    k('s_waitcnt lgkmcnt(0)')
    k('s_mov_b64 exec, 1')
    k('v_lshrrev_b32 v1, 6, v0')
    k('v_lshlrev_b32 v1, 6, v1')
    k('s_lshl_b32 s68, s2, 9')
    k(f's_add_u32 s68, s68, {STAMP_OFF}')
    k('s_mov_b32 s26, 0x8000000')
    for i in range(n):
        k(f's_sub_u32 s69, s{70 + 2 * i}, s70')
        k('v_mov_b32 v2, s69')
        k(f'buffer_store_dword v2, v1, {srd}, s68 offen offset:{4 * i}')
    k('v_mov_b32 v2, s96')
    k(f'buffer_store_dword v2, v1, {srd}, s68 offen offset:56')
    k('v_mov_b32 v2, s98')
    k(f'buffer_store_dword v2, v1, {srd}, s68 offen offset:60')
```

```python
UT_P = 4224
UT = 0
XT = 0x2A0000
KR = 0x520000
KR_P = 4608
KINV = 0x7F0000
CS1 = 0x7F1000
CS3 = 0x7F2000
ST4 = 0x7F4000
HT = 0x820000
HR = 0xAA0000
XB = 0xD20000
HB = 0xFA0000
X1 = 0x1220000
GG = 0x14A0000
WS_END = 0x1B60000
```

```python
from asmlib import *
from layout import *
import math

LOG2E = math.log2(math.e)
def hi16(x):
    u = f2u(x) & 0xFFFFFF00
    return struct.unpack('<f', struct.pack('<I', u))[0]
L_HI = hi16(LOG2E)
L_LO_LN2 = (LOG2E - L_HI) * math.log(2.0)

def wave_sum(k, v, sdst):
    k(f'v_add_f32 v{v}, v{v}, v{v} quad_perm:[1,0,3,2] row_mask:0xf bank_mask:0xf')
    k(f'v_add_f32 v{v}, v{v}, v{v} quad_perm:[2,3,0,1] row_mask:0xf bank_mask:0xf')
    k(f'v_add_f32 v{v}, v{v}, v{v} row_half_mirror row_mask:0xf bank_mask:0xf')
    k(f'v_add_f32 v{v}, v{v}, v{v} row_mirror row_mask:0xf bank_mask:0xf')
    k(f'v_add_f32 v{v}, v{v}, v{v} row_bcast:15 row_mask:0xa bank_mask:0xf')
    k(f'v_add_f32 v{v}, v{v}, v{v} row_bcast:31 row_mask:0xc bank_mask:0xf')
    k(f'v_readlane_b32 s{sdst}, v{v}, 63')

def exp_bf16(k, dst, src, t1, t2, sLhi, sLlo):
    k(f'v_lshlrev_b32 v{t1}, 16, v{src}')
    k(f'v_mul_f32 v{t2}, s{sLhi}, v{t1}')
    k(f'v_mul_f32 v{t1}, s{sLlo}, v{t1}')
    k(f'v_exp_f32 v{t2}, v{t2}')
    k(f'v_fma_f32 v{t2}, v{t2}, v{t1}, v{t2}')
    k(f'v_cvt_pk_bf16_f32 v{t2}, v{t2}, v{t2}')
    k(f'v_lshlrev_b32 v{dst}, 16, v{t2}')

N_LN = 320
N_CS = 37
N_KG = 640
TP = 272
TB = 41 * TP
KD = 2 * TB

def gen_s1():
    k = Kernel('s1_kernel', N_LN + N_CS + N_KG, 256, 26624)
    stamp(k, 0)
    k('s_load_dwordx2 s[4:5], s[0:1], 112')
    k(f's_cmp_lt_u32 s2, {N_LN}')
    k('s_cbranch_scc1 S1_LN')
    k(f's_cmp_lt_u32 s2, {N_LN + N_CS}')
    k('s_cbranch_scc1 S1_CS')
    k(f's_cmp_ge_u32 s2, {N_LN + N_CS + N_KG}')
    k('s_cbranch_scc1 S1_END')
    k('s_load_dwordx8 s[8:15], s[0:1], 8')
    k('s_load_dwordx2 s[16:17], s[0:1], 40')
    k(f's_sub_u32 s3, s2, {N_LN + N_CS}')
    k('v_and_b32 v1, 63, v0')
    k('v_lshrrev_b32 v2, 6, v0')
    k('v_readfirstlane_b32 s20, v2')
    k('s_lshl_b32 s21, s3, 8')
    k('v_lshl_add_u32 v3, v1, 1, s21')
    k('s_lshl_b32 s21, s3, 1')
    k('v_mov_b32 v4, s21')
    k('s_waitcnt lgkmcnt(0)')
    stamp(k, 1)
    k('global_load_ushort v5, v4, s[16:17]')
    for r in range(2):
        for j in range(4):
            k(f'global_load_ushort v{6 + 4 * r + j}, v3, s[{8 + 2 * j}:{9 + 2 * j}] offset:{128 * r}')
    k('s_mov_b32 s24, s4\ns_mov_b32 s25, s5')
    k(f's_mov_b32 s26, {WS_END}\ns_mov_b32 s27, 0x00020000')
    k('s_and_b32 s22, s20, 1')
    k('s_lshr_b32 s23, s20, 1')
    k('s_cmp_eq_u32 s22, 0')
    for i, (a, b) in enumerate(((0.0, 24.0), (1.0, 2.0), (1.0, 4.0), (1.0, 8.0), (2.0, 8.0))):
        k(f's_cselect_b32 s{30 + i}, {hexf(a)}, {hexf(b)}')
    k(f's_cselect_b32 s35, 0, {20 * TP}')
    k('s_cmp_eq_u32 s23, 0')
    k(f's_mov_b32 s36, {hexf(LOG2E)}\ns_cselect_b32 s36, s36, {hexf(16 * LOG2E)}')
    k(f's_mov_b32 s37, {hexf(0.5 / math.pi)}\ns_cselect_b32 s37, s37, {hexf(-8.0 / math.pi)}')
    k(f's_cselect_b32 s38, 0, {TB}')
    k('s_cselect_b64 s[40:41], 0, -1')
    k('s_add_u32 s35, s35, s38')
    k(f's_mov_b32 s42, {hexf(L_HI)}\ns_mov_b32 s43, {hexf(L_LO_LN2)}')
    k('v_lshlrev_b32 v20, 3, v0')
    k('v_sub_u32 v20, 2047, v20')
    for e in range(0, 8, 2):
        k(f'v_subrev_u32 v21, {e}, v20')
        k(f'v_subrev_u32 v22, {e + 1}, v20')
        k('v_cvt_f32_u32 v21, v21\nv_cvt_f32_u32 v22, v22')
        k('v_cvt_pk_bf16_f32 v21, v21, v22')
        k('v_and_b32 v22, 0xffff0000, v21')
        k('v_lshlrev_b32 v21, 16, v21')
        k('v_cvt_u32_f32 v21, v21\nv_cvt_u32_f32 v22, v22')
        k(f'v_lshlrev_b32 v{64 + e}, 1, v21')
        k(f'v_lshlrev_b32 v{65 + e}, 1, v22')
    k('v_and_b32 v20, 15, v1')
    k('v_lshrrev_b32 v21, 4, v1')
    k('s_lshl_b32 s44, 1, s20')
    k('s_lshl_b32 s45, s44, 3')
    k('s_cmp_eq_u32 s20, 0')
    k('s_cselect_b32 s45, 0, s45')
    k('v_lshlrev_b32 v22, s20, v20')
    k('v_add_u32 v23, s45, v22')
    k('v_min_u32 v23, 0x80, v23')
    for src, dst, base in ((23, 72, TB), (22, 73, 0)):
        k(f'v_lshrrev_b32 v24, 1, v{src}\nv_add_u32 v24, 8, v24')
        k(f'v_lshrrev_b32 v25, 2, v{src}\nv_add_u32 v25, 16, v25')
        k(f'v_lshrrev_b32 v26, 3, v{src}\nv_add_u32 v26, 24, v26')
        k(f'v_min3_u32 v24, v24, v25, v26')
        k(f'v_min_u32 v24, v24, v{src}')
        k(f'v_mul_u32_u24 v24, {TP}, v24')
        k(f'v_lshl_add_u32 v24, v21, 4, v24')
        k(f'v_add_u32 v{dst}, {base}, v24')
    k('v_lshlrev_b32 v24, 2, v21')
    k('v_lshlrev_b32 v24, s20, v24')
    k('v_add_u32 v24, s45, v24')
    k('v_lshl_add_u32 v74, v24, 4, v22')
    k('s_lshl_b32 s46, s44, 8')
    k('s_cmp_eq_u32 s20, 3')
    k('s_cselect_b32 s47, 1, 0')
    k('s_add_u32 s46, s46, s47')
    k('s_lshl_b32 s47, s44, 4')
    stamp(k, 2)
    k('s_waitcnt vmcnt(8)')
    stamp(k, 3)
    exp_bf16(k, 5, 5, 20, 21, 42, 43)
    for r in range(2):
        b = 6 + 4 * r
        k(f's_waitcnt vmcnt({4 - 4 * r})')
        exp_bf16(k, b, b, 20, 21, 42, 43)
        k(f'v_mul_f32 v{b}, v{b}, v5')
        k(f'v_mul_f32 v{b}, s36, v{b}')
        k(f'v_sub_f32 v{b}, 0, v{b}')
        for j in (1, 2, 3):
            k(f'v_lshlrev_b32 v{b + j}, 16, v{b + j}')
            k(f'v_mul_f32 v{b + j}, v{b + j}, v5')
        k(f'v_mul_f32 v{b + 1}, s37, v{b + 1}')
    k('v_add_f32 v20, |v8|, |v9|')
    k('v_add_f32 v21, |v12|, |v13|')
    k('v_add_f32 v20, v20, v21')
    wave_sum(k, 20, 48)
    k('s_lshr_b32 s48, s48, 23')
    k('s_add_u32 s48, s48, 1')
    k('s_max_u32 s48, s48, 20')
    k('s_min_u32 s48, s48, 254')
    k('s_sub_u32 s49, 269, s48')
    k('s_lshl_b32 s49, s49, 23')
    k('s_sub_u32 s50, s48, 14')
    k('s_lshl_b32 s50, s50, 23')
    for r in range(2):
        b = 6 + 4 * r
        k(f'v_mul_f32 v{b + 2}, s49, v{b + 2}')
        k(f'v_mul_f32 v{b + 3}, s49, v{b + 3}')
        k(f'v_cndmask_b32 v{b + 2}, 1.0, v{b + 2}, s[40:41]')
        k(f'v_cndmask_b32 v{b + 3}, 0, -v{b + 3}, s[40:41]')
    def seeds(r, base):
        b = 6 + 4 * r
        for i in range(5):
            k(f'v_mul_f32 v{20 + i}, s{30 + i}, v{b}')
            k(f'v_mul_f32 v{25 + i}, s{30 + i}, v{b + 1}')
        for i in range(5):
            k(f'v_exp_f32 v{20 + i}, v{20 + i}')
            k(f'v_fract_f32 v{25 + i}, v{25 + i}')
        for i in range(5):
            k(f'v_cos_f32 v{base + 2 * i}, v{25 + i}')
            k(f'v_sin_f32 v{base + 2 * i + 1}, v{25 + i}')
        for i in range(5):
            k(f'v_mul_f32 v{base + 2 * i}, v{base + 2 * i}, v{20 + i}')
            k(f'v_mul_f32 v{base + 2 * i + 1}, v{base + 2 * i + 1}, v{20 + i}')
        k(f'v_mul_f32 v20, v{base + 1}, v{b + 3}')
        k(f'v_mul_f32 v21, v{base + 1}, v{b + 2}')
        k(f'v_fma_f32 v{base + 1}, v{base}, v{b + 3}, v21')
        k(f'v_fma_f32 v{base}, v{base}, v{b + 2}, -v20')
    def steps(base, extra=None):
        k('s_mov_b32 m0, s35')
        k('s_cmp_lg_u32 s22, 0')
        lbl = f'S1_SKIP{base}'
        k(f's_cbranch_scc1 {lbl}')
        k(f'v_fma_mixlo_f16 v32, v{base}, 1.0, 0')
        k(f'v_fma_mixhi_f16 v32, v{base + 1}, 1.0, 0')
        k('ds_write_addtid_b32 v32 offset:0')
        k.label(lbl)
        cur = (base, base + 1); nxt = (30, 31)
        i = 1
        for seg, n in enumerate((4, 8, 4, 4)):
            mr = base + 2 + 2 * seg; mi = mr + 1
            for _ in range(n):
                p = 32 + (i & 3)
                k(f'v_mul_f32 v36, v{cur[1]}, v{mi}')
                k(f'v_mul_f32 v37, v{cur[1]}, v{mr}')
                k(f'v_fma_f32 v{nxt[0]}, v{cur[0]}, v{mr}, -v36')
                k(f'v_fma_f32 v{nxt[1]}, v{cur[0]}, v{mi}, v37')
                k(f'v_fma_mixlo_f16 v{p}, v{nxt[0]}, 1.0, 0')
                k(f'v_fma_mixhi_f16 v{p}, v{nxt[1]}, 1.0, 0')
                k(f'ds_write_addtid_b32 v{p} offset:{i * TP}')
                if extra and i in extra: k(extra[i])
                cur, nxt = nxt, cur
                i += 1
    def reads():
        for kk in range(4):
            k(f'ds_read_b128 v[{80 + 8 * kk}:{83 + 8 * kk}], v72 offset:{64 * kk}')
            k(f'ds_read_b128 v[{84 + 8 * kk}:{87 + 8 * kk}], v73 offset:{64 * kk}')
    def mf(kk, first):
        c = '0' if first else 'v[76:79]'
        return f'v_mfma_f32_16x16x32_f16 v[76:79], v[{80 + 8 * kk}:{83 + 8 * kk}], v[{84 + 8 * kk}:{87 + 8 * kk}], {c}'
    stamp(k, 4)
    seeds(0, 40)
    stamp(k, 5)
    steps(40)
    stamp(k, 6)
    seeds(1, 50)
    k('s_waitcnt lgkmcnt(0)\ns_barrier')
    reads()
    k('s_waitcnt lgkmcnt(0)\ns_barrier')
    stamp(k, 7)
    steps(50, {2: mf(0, True), 5: mf(1, False), 8: mf(2, False), 11: mf(3, False)})
    k('s_waitcnt lgkmcnt(0)\ns_barrier')
    reads()
    for kk in range(4):
        k(f's_waitcnt lgkmcnt({6 - 2 * kk})')
        k(mf(kk, False))
    stamp(k, 8)
    k('v_mov_b32 v28, 0x1010')
    for j in range(4):
        k(f'v_cmp_gt_u32 vcc, s46, v74')
        k(f'v_lshlrev_b32 v20, 1, v74')
        k(f'v_cndmask_b32 v20, v28, v20, vcc')
        k(f'v_cvt_f16_f32 v21, v{76 + j}')
        k(f'ds_write_b16 v20, v21 offset:{KD}')
        if j < 3: k('v_add_u32 v74, s47, v74')
    k('s_waitcnt lgkmcnt(0)\ns_barrier')
    for e in range(8):
        k(f'ds_read_u16 v{40 + e}, v{64 + e} offset:{KD}')
    k(f's_mul_i32 s21, s3, {KR_P}')
    k(f's_add_u32 s21, s21, {KR}')
    k('v_lshlrev_b32 v24, 4, v0')
    k('v_mov_b32 v28, 0\nv_mov_b32 v29, 0\nv_mov_b32 v30, 0\nv_mov_b32 v31, 0')
    k('s_waitcnt lgkmcnt(0)')
    for e in range(4): k(f'v_lshl_or_b32 v{20 + e}, v{41 + 2 * e}, 16, v{40 + 2 * e}')
    k('buffer_store_dwordx4 v[20:23], v24, s[24:27], s21 offen')
    k('v_cmp_gt_u32 vcc, 32, v0')
    k('s_and_saveexec_b64 s[52:53], vcc')
    k('s_add_u32 s21, s21, 4096')
    k('buffer_store_dwordx4 v[28:31], v24, s[24:27], s21 offen')
    k('v_cmp_gt_u32 vcc, 4, v0')
    k('s_and_b64 exec, exec, vcc')
    k(f's_mul_i32 s21, s3, {UT_P}')
    k(f's_add_u32 s21, s21, {UT}')
    k('buffer_store_dwordx4 v[28:31], v24, s[24:27], s21 offen')
    k('v_cmp_gt_u32 vcc, 1, v0')
    k('s_and_b64 exec, exec, vcc')
    k('s_lshl_b32 s21, s3, 2')
    k(f's_add_u32 s21, s21, {KINV}')
    k('v_mov_b32 v25, s50')
    k('buffer_store_dword v25, v24, s[24:27], s21 offen')
    stamp(k, 9)
    stamp_end(k, 10)
    k('s_endpgm')
    k.label('S1_LN')
    k('s_load_dwordx2 s[8:9], s[0:1], 0')
    k('s_and_b32 s20, s2, 63')
    k('s_lshr_b32 s21, s2, 6')
    k('v_lshrrev_b32 v1, 3, v0')
    k('v_and_b32 v2, 7, v0')
    k('s_lshl_b32 s22, s20, 5')
    k('v_add_u32 v3, s22, v1')
    k('v_mul_u32_u24 v3, 1280, v3')
    k('v_lshl_add_u32 v3, v2, 4, v3')
    k('s_lshl_b32 s23, s21, 8')
    k('s_waitcnt lgkmcnt(0)')
    stamp(k, 1)
    k('s_mov_b32 s10, 2621440\ns_mov_b32 s11, 0x00020000')
    k('s_mov_b32 s24, s4\ns_mov_b32 s25, s5')
    k(f's_mov_b32 s26, {WS_END}\ns_mov_b32 s27, 0x00020000')
    for i in range(10):
        k(f'buffer_load_dwordx4 v[{12 + 8 * i}:{15 + 8 * i}], v3, s[8:11], s23 offen')
        k('s_add_u32 s23, s23, 128')
        k('s_cmp_eq_u32 s23, 1280')
        k('s_cselect_b32 s23, 0, s23')
    k('v_and_b32 v4, 0x13, v1')
    k('v_bfe_u32 v5, v1, 2, 1')
    k('v_lshl_or_b32 v4, v5, 3, v4')
    k('v_bfe_u32 v5, v1, 3, 1')
    k('v_lshl_or_b32 v4, v5, 2, v4')
    k('v_mul_u32_u24 v4, 288, v4')
    k('v_lshl_add_u32 v4, v2, 4, v4')
    k('v_mov_b32 v88, 0\nv_mov_b32 v89, 0\nv_mov_b32 v90, 0\nv_mov_b32 v91, 0')
    stamp(k, 2)
    for i in range(10):
        k(f's_waitcnt vmcnt({9 - i})')
        b = 8 + 8 * i
        if i < 2: k(f'ds_write_b128 v4, v[{b + 4}:{b + 7}] offset:{9216 + 128 * i}')
        for j in range(4):
            k(f'v_lshlrev_b32 v{b + 2 * j}, 16, v{b + 4 + j}')
            if j < 3 or True:
                pass
            k(f'v_and_b32 v{b + 2 * j + 1}, 0xffff0000, v{b + 4 + j}')
        for j in range(8):
            k(f'v_add_f32 v{88 + (j & 3)}, v{88 + (j & 3)}, v{b + j}')
    k('v_add_f32 v88, v88, v89\nv_add_f32 v90, v90, v91\nv_add_f32 v88, v88, v90')
    def red8(v):
        k(f'v_add_f32 v{v}, v{v}, v{v} quad_perm:[1,0,3,2] row_mask:0xf bank_mask:0xf')
        k(f'v_add_f32 v{v}, v{v}, v{v} quad_perm:[2,3,0,1] row_mask:0xf bank_mask:0xf')
        k(f'v_add_f32 v{v}, v{v}, v{v} row_half_mirror row_mask:0xf bank_mask:0xf')
    red8(88)
    stamp(k, 3)
    k(f'v_mul_f32 v92, {hexf(1.0 / 640)}, v88')
    k('v_mov_b32 v88, 0\nv_mov_b32 v89, 0\nv_mov_b32 v90, 0\nv_mov_b32 v91, 0')
    for e in range(80):
        t = 94 + (e & 3)
        k(f'v_sub_f32 v{t}, v{8 + e}, v92')
        k(f'v_fma_f32 v{88 + (e & 3)}, v{t}, v{t}, v{88 + (e & 3)}')
    k('v_add_f32 v88, v88, v89\nv_add_f32 v90, v90, v91\nv_add_f32 v88, v88, v90')
    red8(88)
    k(f'v_mul_f32 v88, {hexf(1.0 / 640)}, v88')
    k('v_cvt_pk_bf16_f32 v88, v88, v92')
    k('v_and_b32 v92, 0xffff0000, v88')
    k('v_lshlrev_b32 v88, 16, v88')
    k(f'v_add_f32 v88, {hexf(1e-5)}, v88')
    k('v_cvt_pk_bf16_f32 v88, v88, v88')
    k('v_lshlrev_b32 v88, 16, v88')
    k('v_sqrt_f32 v88, v88')
    k('v_cvt_pk_bf16_f32 v88, v88, v88')
    k('v_lshlrev_b32 v88, 16, v88')
    k('v_rcp_f32 v93, v88')
    stamp(k, 4)
    for i in range(2):
        b = 8 + 8 * i
        for j in range(8): k(f'v_sub_f32 v{b + j}, v{b + j}, v92')
        for j in range(4): k(f'v_cvt_pk_bf16_f32 v{94 + j}, v{b + 2 * j}, v{b + 2 * j + 1}')
        for j in range(4):
            k(f'v_lshlrev_b32 v{b + 2 * j}, 16, v{94 + j}')
            k(f'v_and_b32 v{b + 2 * j + 1}, 0xffff0000, v{94 + j}')
        for j in range(8): k(f'v_mul_f32 v{b + j}, v{b + j}, v93')
        for j in range(4): k(f'v_cvt_pk_bf16_f32 v{94 + j}, v{b + 2 * j}, v{b + 2 * j + 1}')
        for j in range(4):
            k(f'v_lshlrev_b32 v{b + 2 * j}, 16, v{94 + j}')
            k(f'v_and_b32 v{b + 2 * j + 1}, 0xffff0000, v{94 + j}')
        for j in range(4): k(f'v_cvt_pkrtz_f16_f32 v{24 + 4 * i + j}, v{b + 2 * j}, v{b + 2 * j + 1}')
        k(f'ds_write_b128 v4, v[{24 + 4 * i}:{27 + 4 * i}] offset:{128 * i}')
    k('v_and_b32 v5, 63, v0')
    k('v_lshrrev_b32 v6, 4, v5')
    k('v_bfe_u32 v7, v5, 2, 2')
    k('v_and_b32 v32, 1, v6')
    k('v_lshl_add_u32 v7, v32, 2, v7')
    k('v_lshrrev_b32 v32, 1, v6')
    k('v_lshl_add_u32 v7, v32, 4, v7')
    k('v_mul_u32_u24 v7, 288, v7')
    k('v_and_b32 v32, 3, v5')
    k('v_lshl_add_u32 v7, v32, 3, v7')
    k('v_lshrrev_b32 v33, 6, v0')
    k('v_lshl_add_u32 v7, v33, 6, v7')
    k('v_and_b32 v34, 15, v5')
    k('v_lshl_add_u32 v34, v33, 5, v34')
    k('s_lshl_b32 s22, s21, 7')
    k('v_add_u32 v34, s22, v34')
    k(f'v_mul_u32_u24 v35, {UT_P}, v34')
    k('v_lshl_add_u32 v35, v6, 4, v35')
    k('v_lshlrev_b32 v36, 12, v34')
    k('v_lshl_add_u32 v36, v6, 4, v36')
    k('s_lshl_b32 s22, s20, 6')
    k(f's_add_u32 s28, s22, {UT + 64}')
    k(f's_add_u32 s29, s22, {XT}')
    k(f's_add_u32 s30, s28, {16 * UT_P}')
    k(f's_add_u32 s31, s29, {16 * 4096}')
    stamp(k, 5)
    k('s_waitcnt lgkmcnt(0)\ns_barrier')
    stamp(k, 6)
    for a in range(2):
        for s in range(2):
            d = 40 + 8 * a + 4 * s
            k(f'ds_read_b64_tr_b16 v[{d}:{d + 1}], v7 offset:{9216 * a + 32 * s}')
            k(f'ds_read_b64_tr_b16 v[{d + 2}:{d + 3}], v7 offset:{9216 * a + 32 * s + 8 * 288}')
    for a in range(2):
        for s in range(2):
            d = 40 + 8 * a + 4 * s
            k(f's_waitcnt lgkmcnt({6 - 4 * a - 2 * s})')
            k(f'buffer_store_dwordx4 v[{d}:{d + 3}], v{35 + a}, s[24:27], s{28 + a + 2 * s} offen')
    stamp(k, 7)
    stamp_end(k, 8)
    k('s_endpgm')
    k.label('S1_CS')
    k('s_load_dwordx2 s[8:9], s[0:1], 64')
    k('s_load_dwordx2 s[12:13], s[0:1], 80')
    k(f's_sub_u32 s20, s2, {N_LN}')
    k('s_sub_u32 s21, s20, 10')
    k('s_cmp_lt_u32 s20, 10')
    k('s_cselect_b32 s20, s20, s21')
    k('s_movk_i32 s22, 1280\ns_cselect_b32 s22, s22, 3456')
    k(f's_mov_b32 s28, {CS1}\ns_cselect_b32 s28, s28, {CS3}')
    k('s_waitcnt lgkmcnt(0)')
    k('s_cselect_b32 s8, s8, s12')
    k('s_cselect_b32 s9, s9, s13')
    k('s_mul_i32 s10, s22, 640\ns_mov_b32 s11, 0x00020000')
    k('s_mov_b32 s24, s4\ns_mov_b32 s25, s5')
    k(f's_mov_b32 s26, {WS_END}\ns_mov_b32 s27, 0x00020000')
    k('v_lshrrev_b32 v1, 3, v0')
    k('v_and_b32 v2, 7, v0')
    k('v_mul_lo_u32 v3, v1, s22')
    k('v_lshl_add_u32 v3, v2, 4, v3')
    k('s_lshl_b32 s23, s20, 7')
    k('s_lshl_b32 s29, s22, 5')
    for i in range(20):
        k(f'buffer_load_dwordx4 v[{8 + 4 * i}:{11 + 4 * i}], v3, s[8:11], s23 offen')
        k('s_add_u32 s23, s23, s29')
    stamp(k, 1)
    for j in range(8): k(f'v_mov_b32 v{88 + j}, 0')
    for i in range(20):
        k(f's_waitcnt vmcnt({19 - i})')
        for j in range(4):
            k(f'v_lshlrev_b32 v{96 + j}, 16, v{8 + 4 * i + j}')
            k(f'v_and_b32 v{100 + j}, 0xffff0000, v{8 + 4 * i + j}')
        for j in range(4):
            k(f'v_add_f32 v{88 + 2 * j}, v{88 + 2 * j}, v{96 + j}')
            k(f'v_add_f32 v{89 + 2 * j}, v{89 + 2 * j}, v{100 + j}')
    stamp(k, 2)
    k('v_lshlrev_b32 v4, 5, v0')
    k('ds_write_b128 v4, v[88:91]')
    k('ds_write_b128 v4, v[92:95] offset:16')
    k('s_waitcnt lgkmcnt(0)\ns_barrier')
    k('v_cmp_gt_u32 vcc, 64, v0')
    k('s_and_saveexec_b64 s[52:53], vcc')
    k('s_cbranch_execz S1_END')
    k('v_lshlrev_b32 v4, 2, v0')
    for i in range(32): k(f'ds_read_b32 v{8 + i}, v4 offset:{256 * i}')
    k('s_waitcnt lgkmcnt(0)')
    for st in (16, 8, 4, 2, 1):
        for i in range(st): k(f'v_add_f32 v{8 + i}, v{8 + i}, v{8 + i + st}')
    k('s_lshl_b32 s23, s20, 8')
    k('s_add_u32 s23, s23, s28')
    k('buffer_store_dword v8, v4, s[24:27], s23 offen')
    stamp(k, 3)
    stamp_end(k, 4)
    k.label('S1_END')
    k('s_endpgm')
    return k
```

```python
from asmlib import *
from layout import *

UB = 33280
def gen_s2():
    k = Kernel('s2_kernel', 640, 256, 37888)
    k('s_cmp_ge_u32 s2, 640')
    k('s_cbranch_scc1 S2_END')
    stamp(k, 0)
    k('s_load_dwordx2 s[4:5], s[0:1], 112')
    k('s_load_dwordx2 s[6:7], s[0:1], 48')
    k('v_and_b32 v1, 63, v0')
    k('v_lshrrev_b32 v2, 6, v0')
    k('v_readfirstlane_b32 s20, v2')
    k(f's_mul_i32 s21, s2, {UT_P}')
    k(f's_add_u32 s21, s21, {UT + 34}')
    k(f's_mul_i32 s22, s2, {KR_P}')
    k(f's_add_u32 s22, s22, {KR - UB}')
    k('s_lshl_b32 s23, s20, 10')
    k('v_lshl_add_u32 v3, v2, 6, v1')
    k('s_mov_b32 s28, 4158')
    k('s_waitcnt lgkmcnt(0)')
    stamp(k, 7)
    k('s_mov_b32 s24, s4\ns_mov_b32 s25, s5')
    k(f's_mov_b32 s26, {WS_END}\ns_mov_b32 s27, 0x00020000')
    for i in range(10):
        if i == 9:
            k('s_cmp_lg_u32 s20, 0')
            k('s_cbranch_scc1 S2_DMA_DONE')
        k('v_mul_u32_u24 v4, 8066, v3')
        k('v_lshrrev_b32 v4, 21, v4')
        k('v_mul_u32_u24 v5, s28, v4')
        k('v_lshlrev_b32 v6, 4, v3')
        k('v_sub_u32 v5, v6, v5')
        k('v_add_u32 v5, s21, v5')
        if i >= 8:
            k('v_add_u32 v6, s22, v6')
            k('v_cmp_gt_u32 vcc, 8, v4')
            k('v_cndmask_b32 v5, v6, v5, vcc')
        k('s_mov_b32 m0, s23')
        k('s_add_u32 s23, s23, 4096')
        k('buffer_load_dwordx4 v5, s[24:27], 0 offen lds')
        k('v_add_u32 v3, 0x100, v3')
        if i in (0, 3, 6, 8): stamp(k, {0: 8, 3: 9, 6: 10, 8: 11}[i])
    k.label('S2_DMA_DONE')
    k('v_and_b32 v7, 15, v1')
    k('v_lshrrev_b32 v8, 4, v1')
    k('v_lshlrev_b32 v9, 5, v7')
    k('v_lshl_add_u32 v9, v8, 3, v9')
    k('s_lshl_b32 s29, s20, 10')
    k('v_add_u32 v9, s29, v9')
    k('s_lshl_b32 s30, s2, 12')
    k(f's_add_u32 s31, s30, {XT}')
    k(f's_add_u32 s32, s30, {HT}')
    k('buffer_load_dwordx2 v[10:11], v9, s[24:27], s31 offen')
    k('buffer_load_dwordx2 v[12:13], v9, s[24:27], s31 offen offset:512')
    k('s_lshl_b32 s33, s2, 1')
    k('v_mov_b32 v14, s33')
    k('global_load_ushort v14, v14, s[6:7]')
    k('s_lshl_b32 s33, s2, 2')
    k(f's_add_u32 s33, s33, {KINV}')
    k('v_mov_b32 v15, 0')
    k('buffer_load_dword v15, v15, s[24:27], s33 offen')
    k('v_and_b32 v16, 7, v7')
    k('v_mul_u32_u24 v16, 4160, v16')
    k('v_lshrrev_b32 v17, 3, v7')
    k('v_add_u32 v17, v17, v8')
    k('v_lshl_add_u32 v16, v17, 4, v16')
    k('s_lshl_b32 s29, s20, 7')
    k('v_add_u32 v16, s29, v16')
    k('v_lshlrev_b32 v17, 4, v8')
    k('v_lshlrev_b32 v18, 5, v7')
    k('v_sub_u32 v17, v17, v18')
    k(f's_add_u32 s29, s29, {UB + 480}')
    k('v_add_u32 v17, s29, v17')
    k(f'v_add_u32 v18, {7 * 4160 + 16}, v9')
    stamp(k, 1)
    k('s_waitcnt vmcnt(4)')
    stamp(k, 2)
    k('s_barrier')
    stamp(k, 3)
    FB = (64, 128); GB = (96, 160)
    ACC = 32
    def rd(r):
        for q in range(8):
            k(f'ds_read_b128 v[{FB[r] + 4 * q}:{FB[r] + 4 * q + 3}], v16 offset:{512 * q + 64 * r}')
            k(f'ds_read_b128 v[{GB[r] + 4 * q}:{GB[r] + 4 * q + 3}], v17 offset:{512 * (7 - q) + 64 * r}')
    rd(0)
    k('ds_read_b64 v[20:21], v18')
    k('ds_read_b64 v[22:23], v18 offset:512')
    rd(1)
    first = set()
    for r in range(2):
        for m in range(8):
            rem = (32 - 2 * (m + 1)) + 2 if r == 0 else (16 - 2 * (m + 1))
            k(f's_waitcnt lgkmcnt({min(rem, 15)})')
            prs = [(m, p) for p in range(m + 1) if m + p <= 7] + [(q, m) for q in range(m) if q + m <= 7]
            for (q, p) in prs:
                jt = q + p
                a = ACC + 4 * jt
                c = f'v[{a}:{a + 3}]' if jt in first else '0'
                first.add(jt)
                k(f'v_mfma_f32_16x16x32_f16 v[{a}:{a + 3}], v[{FB[r] + 4 * q}:{FB[r] + 4 * q + 3}], v[{GB[r] + 4 * p}:{GB[r] + 4 * p + 3}], {c}')
    stamp(k, 4)
    k('s_barrier')
    stamp(k, 5)
    k('v_lshlrev_b32 v24, 4, v1')
    k('s_lshl_b32 s29, s20, 10')
    k('v_add_u32 v24, s29, v24')
    for jt in range(8):
        lbl = f'S2_SK{jt}'
        k(f's_cmp_eq_u32 s20, {jt // 2}')
        k(f's_cbranch_scc1 {lbl}')
        k(f'ds_write_b128 v24, v[{ACC + 4 * jt}:{ACC + 4 * jt + 3}] offset:{4096 * jt}')
        k.label(lbl)
    for w in range(4):
        k(f's_cmp_lg_u32 s20, {w}')
        k(f's_cbranch_scc1 S2_MV{w}')
        for j in range(8): k(f'v_mov_b32 v{64 + j}, v{ACC + 8 * w + j}')
        k.label(f'S2_MV{w}')
    k('v_lshlrev_b32 v25, 4, v1')
    k('s_lshl_b32 s29, s20, 13')
    k('v_add_u32 v25, s29, v25')
    k('s_waitcnt lgkmcnt(0)\ns_barrier')
    stamp(k, 12)
    for o in range(1, 4):
        k(f's_add_u32 s29, s20, {o}')
        k('s_and_b32 s29, s29, 3')
        k('s_lshl_b32 s29, s29, 10')
        k(f'v_add_u32 v{26 + o}, s29, v25')
    for o in range(1, 4):
        for t in range(2):
            d = 72 + 8 * (o - 1) + 4 * t
            k(f'ds_read_b128 v[{d}:{d + 3}], v{26 + o} offset:{4096 * t}')
    k('s_waitcnt vmcnt(0)')
    k('v_lshlrev_b32 v14, 16, v14')
    for t in range(2):
        for j in range(2):
            s = 20 + 2 * t + j
            k(f'v_cvt_f32_f16 v{100 + 4 * t + 2 * j}, v{s}')
            k(f'v_cvt_f32_f16_sdwa v{101 + 4 * t + 2 * j}, v{s} dst_sel:DWORD dst_unused:UNUSED_PAD src0_sel:WORD_1')
    for j in range(8): k(f'v_mul_f32 v{100 + j}, v{100 + j}, v14')
    def rnd(base, tmp):
        for j in range(4): k(f'v_cvt_pk_bf16_f32 v{tmp + j}, v{base + 2 * j}, v{base + 2 * j + 1}')
        for j in range(4):
            k(f'v_lshlrev_b32 v{base + 2 * j}, 16, v{tmp + j}')
            k(f'v_and_b32 v{base + 2 * j + 1}, 0xffff0000, v{tmp + j}')
    rnd(100, 116)
    for j in range(4):
        k(f'v_lshlrev_b32 v{108 + 2 * j}, 16, v{10 + j}')
        k(f'v_and_b32 v{109 + 2 * j}, 0xffff0000, v{10 + j}')
    k('s_waitcnt lgkmcnt(0)')
    for j in range(8):
        k(f'v_add_f32 v{64 + j}, v{64 + j}, v{72 + j}')
        k(f'v_add_f32 v{80 + j}, v{80 + j}, v{88 + j}')
    for j in range(8): k(f'v_add_f32 v{64 + j}, v{64 + j}, v{80 + j}')
    for j in range(8): k(f'v_mul_f32 v{64 + j}, v{64 + j}, v15')
    rnd(64, 116)
    for j in range(8): k(f'v_add_f32 v{64 + j}, v{64 + j}, v{100 + j}')
    rnd(64, 116)
    for j in range(8): k(f'v_add_f32 v{64 + j}, v{64 + j}, v{108 + j}')
    for j in range(4): k(f'v_cvt_pk_bf16_f32 v{116 + j}, v{64 + 2 * j}, v{64 + 2 * j + 1}')
    k('buffer_store_dwordx2 v[116:117], v9, s[24:27], s32 offen')
    k('buffer_store_dwordx2 v[118:119], v9, s[24:27], s32 offen offset:512')
    stamp(k, 6)
    stamp_end(k, 13)
    k.label('S2_END')
    k('s_endpgm')
    return k
```

```python
from asmlib import *
from layout import *
import math

LOG2E = math.log2(math.e)
GC0 = -2.0 * math.sqrt(2.0 / math.pi) * LOG2E
GC1 = GC0 * 0.044715

class VM:
    def __init__(self, k): self.k = k; self.n = 0; self.tags = {}
    def __call__(self, text, tag=None):
        self.k(text); self.n += 1
        if tag is not None: self.tags[tag] = self.n
    def cnt(self, tag): return min(63, self.n - self.tags[tag])
    def wait(self, tag, extra=''): self.k(f's_waitcnt vmcnt({self.cnt(tag)}){extra}')

def red4(k, v, t):
    k(f'v_mov_b32 v{t}, v{v}')
    k(f'v_permlane16_swap_b32 v{v}, v{t}')
    k(f'v_add_f32 v{v}, v{v}, v{t}')
    k(f'v_mov_b32 v{t}, v{v}')
    k(f'v_permlane32_swap_b32 v{v}, v{t}')
    k(f'v_add_f32 v{v}, v{v}, v{t}')

def rbf(k, v):
    k(f'v_cvt_pk_bf16_f32 v{v}, v{v}, v{v}')
    k(f'v_lshlrev_b32 v{v}, 16, v{v}')

def rstd(k, v):
    rbf(k, v)
    k(f'v_add_f32 v{v}, {hexf(1e-5)}, v{v}')
    rbf(k, v)
    k(f'v_sqrt_f32 v{v}, v{v}')
    rbf(k, v)
    k(f'v_rcp_f32 v{v}, v{v}')

def unpack(k, dst, src):
    k(f'v_lshlrev_b32 v{dst}, 16, v{src}')
    k(f'v_and_b32 v{dst + 1}, 0xffff0000, v{src}')

def pr(v): return f'v[{v}:{v + 1}]'

def gelu(k, b, n, T, cp):
    P = range(n // 2)
    for j in P: k(f'v_cvt_pk_bf16_f32 v{T + j}, v{b + 2 * j}, v{b + 2 * j + 1}')
    for j in P: unpack(k, b + 2 * j, T + j)
    for j in P: k(f'v_pk_mul_f32 {pr(T + 2 * j)}, {pr(b + 2 * j)}, {pr(b + 2 * j)}')
    for j in P: k(f'v_pk_fma_f32 {pr(T + 2 * j)}, {pr(T + 2 * j)}, {pr(cp + 2)}, {pr(cp)}')
    for j in P: k(f'v_pk_mul_f32 {pr(T + 2 * j)}, {pr(T + 2 * j)}, {pr(b + 2 * j)}')
    for j in range(n): k(f'v_exp_f32 v{T + j}, v{T + j}')
    for j in P: k(f'v_pk_add_f32 {pr(T + 2 * j)}, {pr(T + 2 * j)}, {pr(cp + 4)}')
    for j in range(n): k(f'v_rcp_f32 v{T + j}, v{T + j}')
    for j in P: k(f'v_pk_mul_f32 {pr(b + 2 * j)}, {pr(b + 2 * j)}, {pr(T + 2 * j)}')
    for j in P: k(f'v_cvt_pk_bf16_f32 v{b + j}, v{b + 2 * j}, v{b + 2 * j + 1}')

ACC = 32; WR = 88; EP = 120; AV = 160
LB = 57344

def gemm(mode):
    cfg = {
        's3': dict(MT=1, NT=5, KS=20, WP=1280, woff=64, lds=163840),
        's4': dict(MT=1, NT=5, KS=20, WP=1280, woff=72, lds=102400),
        's5': dict(MT=2, NT=7, KS=20, WP=3456, woff=80, lds=143360),
        's6': dict(MT=1, NT=5, KS=54, WP=1280, woff=88, lds=163840),
    }[mode]
    MT, NT, KS, WP = cfg['MT'], cfg['NT'], cfg['KS'], cfg['WP']
    P = 32 * NT; LPR = 2 * NT; NI = NT; CH = 128 * P
    NCH = (KS + 3) // 4
    U = mode.upper()
    k = Kernel(mode + '_kernel', 256, 256, cfg['lds'])
    vm = VM(k)
    k('s_cmp_ge_u32 s2, 256')
    k(f's_cbranch_scc1 {U}_END')
    stamp(k, 0)
    k('s_load_dwordx2 s[4:5], s[0:1], 112')
    k(f's_load_dwordx2 s[8:9], s[0:1], {cfg["woff"]}')
    if mode == 's6': k('s_load_dwordx2 s[16:17], s[0:1], 96')
    k('v_and_b32 v1, 63, v0')
    k('v_lshrrev_b32 v2, 6, v0')
    k('v_readfirstlane_b32 s20, v2')
    k('v_lshrrev_b32 v2, 4, v1')
    k('v_and_b32 v3, 15, v1')
    if mode == 's5':
        k('s_and_b32 s21, s2, 15\ns_lshr_b32 s22, s2, 4')
    else:
        k('s_and_b32 s21, s2, 31\ns_lshr_b32 s22, s2, 5')
    magic = {10: 6554, 14: 4682}[LPR]
    for j in range(NI):
        k(f'v_add_u32 v20, {64 * j}, v1')
        k(f'v_mul_u32_u24 v21, {magic}, v20')
        k('v_lshrrev_b32 v21, 16, v21')
        k(f'v_mad_i32_i24 v20, v21, {-LPR}, v20')
        k('v_and_b32 v22, 0x13, v21')
        k('v_bfe_u32 v23, v21, 2, 1')
        k('v_lshl_or_b32 v22, v23, 3, v22')
        k('v_bfe_u32 v23, v21, 3, 1')
        k('v_lshl_or_b32 v22, v23, 2, v22')
        k(f'v_mul_u32_u24 v22, {WP}, v22')
        k(f'v_lshl_add_u32 v{4 + j}, v20, 4, v22')
    k('v_bfe_u32 v20, v1, 2, 2')
    k('v_and_b32 v21, 1, v2')
    k('v_lshl_add_u32 v21, v21, 2, v20')
    k('v_lshrrev_b32 v22, 1, v2')
    k('v_lshl_add_u32 v21, v22, 4, v21')
    k(f'v_mul_u32_u24 v21, {P}, v21')
    k('v_and_b32 v22, 3, v1')
    k(f'v_mul_u32_u24 v23, {8 * NT}, v22')
    k('v_add_u32 v15, v21, v23')
    k(f'v_add_u32 v16, {LB}, v15')
    k(f'v_add_u32 v17, {2 * LB}, v15')
    k(f's_lshl_b32 s23, s21, {6 if MT == 1 else 7}')
    k(f's_lshl_b32 s28, s20, {4 if MT == 1 else 5}')
    k('s_add_u32 s23, s23, s28')
    k('v_add_u32 v24, s23, v3')
    OP = 3456 if mode == 's5' else 1280
    k(f's_mul_i32 s28, s22, {216 if mode == "s5" else 160}')
    k(f'v_mul_u32_u24 v25, {8 * NT}, v2')
    k('v_add_u32 v25, s28, v25')
    k(f'v_mul_u32_u24 v18, {OP}, v24')
    k('v_add_u32 v18, v18, v25')
    if MT == 2: k(f'v_add_u32 v19, {16 * OP}, v18')
    AP = 3456 if mode == 's6' else 1280
    if mode != 's3':
        k(f'v_mul_u32_u24 v11, {AP}, v24')
        k('v_lshl_add_u32 v11, v2, 4, v11')
    if mode == 's4':
        k('v_add_u32 v12, 1280, v11')
        k('v_subrev_u32 v13, 2560, v11')
        k('v_add_u32 v14, 2560, v11')
        k('v_subrev_u32 v11, 1280, v11')
    if mode == 's5': k(f'v_add_u32 v12, {16 * 1280}, v11')
    k(f's_mul_i32 s29, s20, {32 * WP}')
    k('s_add_u32 s29, s29, s28')
    k(f's_mul_i32 s30, s20, {32 * P}')
    if mode == 's3':
        k('s_and_b32 s31, s20, 1')
        k('s_lshl_b32 s31, s31, 1')
        k('v_bfe_u32 v21, v1, 4, 1')
        k('v_or_b32 v21, s31, v21')
        k('v_bfe_u32 v23, v1, 1, 2')
        k('v_xor_b32 v21, v21, v23')
        k('v_lshlrev_b32 v21, 5, v21')
        k('v_and_b32 v23, 1, v1')
        k('v_lshl_or_b32 v21, v23, 4, v21')
        k('v_lshrrev_b32 v23, 3, v1')
        k('v_lshl_or_b32 v11, v23, 12, v21')
        k('v_lshrrev_b32 v21, 1, v20')
        k('v_and_b32 v23, 1, v2')
        k('v_lshl_or_b32 v21, v23, 1, v21')
        k('v_xor_b32 v21, s20, v21')
        k('v_lshlrev_b32 v21, 5, v21')
        k('v_lshl_or_b32 v21, v22, 3, v21')
        k('v_lshl_add_u32 v23, v2, 3, v20')
        k('v_lshl_or_b32 v12, v23, 7, v21')
        k(f'v_add_u32 v13, {LB}, v12')
        k('s_mul_i32 s31, s22, 80')
        k('v_mul_u32_u24 v21, 20, v2')
        k('v_add3_u32 v21, v21, v20, s31')
        for t in range(5):
            if t: k('v_add_u32 v21, 4, v21')
            k('v_bfe_u32 v23, v21, 1, 1')
            k('v_bfe_u32 v25, v21, 3, 1')
            k('v_lshl_or_b32 v23, v25, 1, v23')
            k('v_xor_b32 v23, s20, v23')
            k('v_lshlrev_b32 v23, 5, v23')
            k('v_lshl_or_b32 v23, v22, 3, v23')
            k(f'v_lshl_or_b32 v{26 + t}, v21, 7, v23')
        k('s_lshl_b32 s31, s21, 7')
        k('s_lshl_b32 s32, s20, 15')
        k('s_add_u32 s31, s31, s32')
        k(f's_add_u32 s31, s31, {HT}')
        k('s_lshl_b32 s32, s20, 10')
    k('s_waitcnt lgkmcnt(0)')
    stamp(k, 1)
    k(f's_mov_b32 s10, {640 * 1280 if mode in ("s3", "s4") else 640 * 3456}\ns_mov_b32 s11, 0x00020000')
    k('s_mov_b32 s24, s4\ns_mov_b32 s25, s5')
    k(f's_mov_b32 s26, {WS_END}\ns_mov_b32 s27, 0x00020000')
    if mode == 's4':
        k(f's_add_u32 s12, s4, {HB}\ns_addc_u32 s13, s5, 0')
        k(f's_mov_b32 s14, {2048 * 1280}\ns_mov_b32 s15, 0x00020000')
    if mode == 's6':
        k(f's_mov_b32 s18, {2048 * 1280}\ns_mov_b32 s19, 0x00020000')
    def slot(c):
        if mode == 's3': return 81920 + CH * c if c < 4 else 0
        if mode == 's6': return CH * (c % 8)
        return CH * c
    def areg(s, mt):
        if mode == 's3' or mode == 's4': i = AV + 4 * s; return f'v[{i}:{i + 3}]'
        if mode == 's5': i = 80 * mt + 4 * s
        else: i = 4 * (s % 32)
        return f'a[{i}:{i + 3}]'
    def dma_w(c):
        k(f's_add_u32 s33, s29, {128 * c * WP}')
        for j in range(NI):
            k(f's_add_u32 m0, s30, {slot(c) + 1024 * j}')
            vm(f'buffer_load_dwordx4 v{4 + j}, s[8:11], s33 offen lds', ('w', c))
    def load_a(c):
        for s in range(4 * c, min(4 * c + 4, KS)):
            for mt in range(MT):
                if mode == 's4': vm(f'buffer_load_dwordx4 {areg(s, 0)}, v{11 + s // 5}, s[12:15], 0 offen offset:{64 * s}', ('w', c))
                elif mode == 's5': vm(f'buffer_load_dwordx4 {areg(s, mt)}, v{11 + mt}, s[24:27], s34 offen offset:{64 * s}', ('w', c))
                elif mode == 's6': vm(f'buffer_load_dwordx4 {areg(s, 0)}, v11, s[24:27], s34 offen offset:{64 * s}', ('w', c))
    if mode == 's5': k(f's_mov_b32 s34, {X1}')
    if mode == 's6': k(f's_mov_b32 s34, {GG}')
    def ld_tile(dst, sreg, tag):
        vm(f'buffer_load_dwordx4 v[{dst}:{dst + 3}], v18, s[24:27], {sreg} offen')
        vm(f'buffer_load_dwordx4 v[{dst + 4}:{dst + 7}], v18, s[24:27], {sreg} offen offset:16')
        vm(f'buffer_load_dwordx2 v[{dst + 8}:{dst + 9}], v18, s[24:27], {sreg} offen offset:32', tag)
    def st_tile(src, sreg, srd='s[24:27]', va=18):
        vm(f'buffer_store_dwordx4 v[{src}:{src + 3}], v{va}, {srd}, {sreg} offen')
        vm(f'buffer_store_dwordx4 v[{src + 4}:{src + 7}], v{va}, {srd}, {sreg} offen offset:16')
        if NT == 5: vm(f'buffer_store_dwordx2 v[{src + 8}:{src + 9}], v{va}, {srd}, {sreg} offen offset:32')
        else: vm(f'buffer_store_dwordx4 v[{src + 8}:{src + 11}], v{va}, {srd}, {sreg} offen offset:32')
    def ld_cs(base):
        k(f's_lshl_b32 s35, s28, 1')
        k(f's_add_u32 s35, s35, {base}')
        k(f'v_mul_u32_u24 v21, {16 * NT}, v2')
        for t in range(NT):
            vm(f'buffer_load_dwordx4 v[{EP + 4 * t}:{EP + 4 * t + 3}], v21, s[24:27], s35 offen offset:{16 * t}', 'cs')
    if mode == 's3':
        for j in range(20):
            k(f's_add_u32 m0, s32, {4096 * j}')
            vm('buffer_load_dwordx4 v11, s[24:27], s31 offen lds', 'ht')
            k(f's_add_u32 s31, s31, {4 * 32768}')
        for c in range(4): dma_w(c)
        ld_cs(CS1)
    else:
        for c in range(min(NCH, 8)):
            dma_w(c); load_a(c)
        if mode == 's4':
            k(f's_mov_b32 s36, {XB}'); ld_tile(EP, 's36', 'res')
        if mode == 's5':
            ld_cs(CS3)
            k('v_lshlrev_b32 v21, 6, v24')
            k('v_lshl_add_u32 v21, v2, 4, v21')
            k(f's_mov_b32 s36, {ST4}')
            vm('buffer_load_dwordx4 v[148:151], v21, s[24:27], s36 offen')
            vm('buffer_load_dwordx4 v[152:155], v21, s[24:27], s36 offen offset:1024', 'st')
    stamp(k, 2)
    k(f'v_mov_b32 v20, {hexf(GC0)}\nv_mov_b32 v21, {hexf(GC0)}')
    k(f'v_mov_b32 v22, {hexf(GC1)}\nv_mov_b32 v23, {hexf(GC1)}')
    k('v_mov_b32 v24, 1.0\nv_mov_b32 v25, 1.0')
    if mode == 's3':
        for j in range(4): k(f'v_mov_b32 v{148 + j}, 0x3f803f80')
        vm.wait('ht')
        k('s_barrier')
        stamp(k, 3)
        def rd_a(s):
            off = 4096 * s; b = 12
            if off >= LB: off -= LB; b = 13
            k(f'ds_read_b64_tr_b16 v[{AV + 4 * s}:{AV + 4 * s + 1}], v{b} offset:{off}')
            k(f'ds_read_b64_tr_b16 v[{AV + 4 * s + 2}:{AV + 4 * s + 3}], v{b} offset:{off + 512}')
        for t in range(5): k(f'ds_read_b64_tr_b16 v[{240 + 2 * t}:{241 + 2 * t}], v{26 + t}')
        D = 6
        for s in range(D): rd_a(s)
        for s in range(20):
            if s + D < 20: rd_a(s + D)
            k(f's_waitcnt lgkmcnt({2 * min(D, 19 - s)})')
            a = areg(s, 0)
            k(f'v_mfma_f32_16x16x32_bf16 v[152:155], v[148:151], {a}, {"v[152:155]" if s else "0"}')
            k(f'v_mfma_f32_16x16x32_bf16 v[156:159], {a}, {a}, {"v[156:159]" if s else "0"}')
        stamp(k, 4)
    items = [(s, t) for s in range(KS) for t in range(NT)]
    D = 7; R = 8
    def rd_w(i):
        s, t = items[i]
        c = s // 4
        if s % 4 == 0 and t == 0:
            vm.wait(('w', c))
            k('s_barrier')
            if c < 6: stamp(k, 5 + c)
            if mode == 's3' and c == 0: dma_w(4)
            if mode == 's6' and c >= 2 and c + 6 < NCH:
                dma_w(c + 6); load_a(c + 6)
                if c + 6 == NCH - 1:
                    k(f's_mov_b32 s36, {X1}'); ld_tile(EP, 's36', 'res')
                    k(f's_mov_b32 s36, {HR}'); ld_tile(EP + 10, 's36', 'res')
        off = slot(c) + (s % 4) * 32 * P + 8 * t
        b = 15 + off // LB; off %= LB
        r = WR + 4 * (i % R)
        k(f'ds_read_b64_tr_b16 v[{r}:{r + 1}], v{b} offset:{off}')
        k(f'ds_read_b64_tr_b16 v[{r + 2}:{r + 3}], v{b} offset:{off + 8 * P}')
    for i in range(D): rd_w(i)
    n = len(items)
    for i in range(n):
        if i + D < n: rd_w(i + D)
        k(f's_waitcnt lgkmcnt({2 * min(D, n - 1 - i)})')
        s, t = items[i]
        r = WR + 4 * (i % R)
        for mt in range(MT):
            a = ACC + 4 * (mt * NT + t)
            k(f'v_mfma_f32_16x16x32_bf16 v[{a}:{a + 3}], v[{r}:{r + 3}], {areg(s, mt)}, {f"v[{a}:{a + 3}]" if s else "0"}')
    stamp(k, 11)
    T = WR
    if mode == 's3':
        k('v_and_b32 v26, 3, v3')
        k('v_cmp_eq_u32 vcc, 1, v26\nv_cndmask_b32 v156, v156, v157, vcc')
        k('v_cmp_eq_u32 vcc, 2, v26\nv_cndmask_b32 v156, v156, v158, vcc')
        k('v_cmp_eq_u32 vcc, 3, v26\nv_cndmask_b32 v156, v156, v159, vcc')
        k('v_lshrrev_b32 v26, 2, v3')
        k('v_cmp_eq_u32 vcc, v26, v2\nv_cndmask_b32 v156, 0, v156, vcc')
        red4(k, 156, 26)
        k(f'v_mul_f32 v152, {hexf(1 / 640)}, v152')
        k(f'v_mul_f32 v156, {hexf(1 / 640)}, v156')
        k('v_fma_f32 v156, -v152, v152, v156')
        k('v_max_f32 v156, 0, v156')
        k('v_mov_b32 v153, v152'); rbf(k, 153)
        k('v_mov_b32 v157, v156'); rstd(k, 157)
        k('v_sub_f32 v154, v152, v153')
        k('v_mul_f32 v154, v154, v157'); rbf(k, 154)
        k('v_mul_f32 v158, v156, v157')
        k('v_mul_f32 v158, v158, v157'); rstd(k, 158)
        k('v_mul_f32 v26, v157, v158')
        k('v_fma_f32 v28, v153, v157, v154')
        k('v_mul_f32 v28, v28, v158')
        k('v_sub_f32 v28, 0, v28')
        k('v_mov_b32 v27, v26\nv_mov_b32 v29, v28')
        k(f's_mov_b32 s36, {HR}'); st_tile(240, 's36')
        vm.wait('cs')
        for j in range(10): k(f'v_pk_mul_f32 {pr(EP + 2 * j)}, {pr(EP + 2 * j)}, {pr(28)}')
        for j in range(10): k(f'v_pk_fma_f32 {pr(ACC + 2 * j)}, {pr(ACC + 2 * j)}, {pr(26)}, {pr(EP + 2 * j)}')
        gelu(k, ACC, 20, T, 20)
        k(f's_mov_b32 s36, {HB}'); st_tile(ACC, 's36')
        X = 60
        k('v_sub_f32 v26, 0, v153\nv_sub_f32 v27, 0, v153')
        k('v_mov_b32 v28, v157\nv_mov_b32 v29, v157')
        for j in range(10): unpack(k, X + 2 * j, 240 + j)
        for j in range(10): k(f'v_pk_add_f32 {pr(X + 2 * j)}, {pr(X + 2 * j)}, {pr(26)}')
        for j in range(10): k(f'v_cvt_pk_bf16_f32 v{T + j}, v{X + 2 * j}, v{X + 2 * j + 1}')
        for j in range(10): unpack(k, X + 2 * j, T + j)
        for j in range(10): k(f'v_pk_mul_f32 {pr(X + 2 * j)}, {pr(X + 2 * j)}, {pr(28)}')
        for j in range(10): k(f'v_cvt_pk_bf16_f32 v{X + j}, v{X + 2 * j}, v{X + 2 * j + 1}')
        k(f's_mov_b32 s36, {XB}'); st_tile(X, 's36')
    elif mode == 's4':
        X = 60
        for j in range(10): k(f'v_cvt_pk_bf16_f32 v{T + j}, v{ACC + 2 * j}, v{ACC + 2 * j + 1}')
        for j in range(10): unpack(k, ACC + 2 * j, T + j)
        vm.wait('res')
        for j in range(10): unpack(k, X + 2 * j, EP + j)
        for j in range(10): k(f'v_pk_add_f32 {pr(ACC + 2 * j)}, {pr(ACC + 2 * j)}, {pr(X + 2 * j)}')
        for j in range(10): k(f'v_cvt_pk_bf16_f32 v{T + j}, v{ACC + 2 * j}, v{ACC + 2 * j + 1}')
        k(f's_mov_b32 s36, {X1}'); st_tile(T, 's36')
        for j in range(10): unpack(k, X + 2 * j, T + j)
        k(f'v_pk_add_f32 {pr(26)}, {pr(X)}, {pr(X + 2)}')
        k(f'v_pk_mul_f32 {pr(28)}, {pr(X)}, {pr(X)}')
        k(f'v_pk_fma_f32 {pr(28)}, {pr(X + 2)}, {pr(X + 2)}, {pr(28)}')
        for j in range(2, 10):
            k(f'v_pk_add_f32 {pr(26)}, {pr(26)}, {pr(X + 2 * j)}')
            k(f'v_pk_fma_f32 {pr(28)}, {pr(X + 2 * j)}, {pr(X + 2 * j)}, {pr(28)}')
        k('v_add_f32 v26, v26, v27\nv_add_f32 v27, v28, v29')
        red4(k, 26, 30); red4(k, 27, 31)
        k('s_lshl_b32 s36, s22, 3')
        k('s_lshl_b32 s37, s23, 6')
        k('s_add_u32 s36, s36, s37')
        k(f's_add_u32 s36, s36, {ST4}')
        k('v_lshlrev_b32 v28, 6, v3')
        k('s_mov_b64 exec, 0xffff')
        vm('buffer_store_dwordx2 v[26:27], v28, s[24:27], s36 offen')
        k('s_mov_b64 exec, -1')
    elif mode == 's5':
        vm.wait('st')
        for mt in range(2):
            b = 148 + 4 * mt
            k(f'v_add_f32 v{b}, v{b}, v{b + 2}\nv_add_f32 v{b + 1}, v{b + 1}, v{b + 3}')
            red4(k, b, b + 2); red4(k, b + 1, b + 3)
            k(f'v_mul_f32 v{b}, {hexf(1 / 640)}, v{b}')
            k(f'v_mul_f32 v{b + 1}, {hexf(1 / 640)}, v{b + 1}')
            k(f'v_fma_f32 v{b + 1}, -v{b}, v{b}, v{b + 1}')
            k(f'v_max_f32 v{b + 1}, 0, v{b + 1}')
            rbf(k, b); rstd(k, b + 1)
            k(f'v_mul_f32 v{b + 2}, v{b}, v{b + 1}')
            k(f'v_sub_f32 v{b + 2}, 0, v{b + 2}')
            k(f'v_mov_b32 v{b + 3}, v{b + 2}')
            k(f'v_mov_b32 v{b}, v{b + 1}')
        k(f's_mov_b32 s36, {GG}')
        k('v_cmp_gt_u32 vcc, 48, v1')
        for mt in range(2):
            b = 148 + 4 * mt; A = ACC + 28 * mt
            for j in range(14): k(f'v_pk_mul_f32 {pr(T + 2 * j)}, {pr(EP + 2 * j)}, {pr(b + 2)}')
            for j in range(14): k(f'v_pk_fma_f32 {pr(A + 2 * j)}, {pr(A + 2 * j)}, {pr(b)}, {pr(T + 2 * j)}')
            gelu(k, A, 28, T, 20)
            st_tile(A, 's36', va=18 + mt)
            k('s_mov_b64 exec, vcc')
            vm(f'buffer_store_dwordx2 v[{A + 12}:{A + 13}], v{18 + mt}, s[24:27], s36 offen offset:48')
            k('s_mov_b64 exec, -1')
    else:
        X = 60
        for j in range(10): k(f'v_cvt_pk_bf16_f32 v{T + j}, v{ACC + 2 * j}, v{ACC + 2 * j + 1}')
        for j in range(10): unpack(k, ACC + 2 * j, T + j)
        vm.wait('res')
        for j in range(10): unpack(k, X + 2 * j, EP + j)
        for j in range(10): k(f'v_pk_add_f32 {pr(ACC + 2 * j)}, {pr(ACC + 2 * j)}, {pr(X + 2 * j)}')
        for j in range(10): k(f'v_cvt_pk_bf16_f32 v{T + j}, v{ACC + 2 * j}, v{ACC + 2 * j + 1}')
        for j in range(10): unpack(k, ACC + 2 * j, T + j)
        for j in range(10): unpack(k, X + 2 * j, EP + 10 + j)
        for j in range(10): k(f'v_pk_add_f32 {pr(ACC + 2 * j)}, {pr(ACC + 2 * j)}, {pr(X + 2 * j)}')
        for j in range(10): k(f'v_cvt_pk_bf16_f32 v{T + j}, v{ACC + 2 * j}, v{ACC + 2 * j + 1}')
        st_tile(T, '0', srd='s[16:19]')
    stamp(k, 12)
    stamp_end(k, 13)
    k.label(f'{U}_END')
    k('s_endpgm')
    return k

def gen_all():
    return [gemm(m) for m in ('s3', 's4', 's5', 's6')]
```

```python
import sys
from asmlib import *
import s1, s2
ks = [s1.gen_s1(), s2.gen_s2()]
try:
    import s3
    ks += s3.gen_all()
except ImportError:
    pass
hdr = ''.join(l for l in open('sequential_preLN__ssm_conv_s4d__mixer_s_mlp__prompt.s.ref') if l.startswith(';') and '@launch' not in l and 'Override' not in l and 'grid=ceil' not in l)
out = assemble(ks, hdr)
path = sys.argv[1] if len(sys.argv) > 1 else 'k.s'
open(path, 'w').write(out)
for k in ks: print(k.name, 'vgpr', k.maxv + 1, 'sgpr', k.maxs + 1, 'lines', len(k.lines))
```

```python
from asmlib import *
from layout import *

assert all((v * 3277) >> 16 == v // 20 for v in range(320))
assert all((v * 1214) >> 16 == v // 54 for v in range(432))
assert all((v * 205) >> 10 == v // 5 for v in range(20))
assert all((v * 43) >> 7 == v // 3 for v in range(48))

def gen_pack(k, L, wg0, mats, endlabel):
    cnt = {'w1': 160, 'w2': 160, 'w3': 320, 'w4': 432}
    start = {}; tot = 0
    for m in mats: start[m] = tot; tot += cnt[m]
    k.label(L)
    k('s_load_dwordx8 s[8:15], s[0:1], 64')
    k('v_and_b32 v1, 63, v0')
    k('v_lshrrev_b32 v2, 6, v0')
    k('v_readfirstlane_b32 s20, v2')
    k(f's_sub_u32 s21, s2, {wg0}')
    k('s_lshl_b32 s21, s21, 2')
    k('s_add_u32 s21, s21, s20')
    k('s_mul_i32 s30, s20, 7168')
    k('s_mov_b32 s43, 0\ns_mov_b32 s44, 0\ns_mov_b32 s42, 4\ns_mov_b32 s47, 0')
    for i, m in enumerate(mats):
        if i + 1 < len(mats):
            k(f's_cmp_ge_u32 s21, {start[mats[i + 1]]}')
            k(f's_cbranch_scc1 {L}_N{i}')
        if start[m]: k(f's_sub_u32 s21, s21, {start[m]}')
        KS = 54 if m == 'w4' else 20
        k(f's_mul_i32 s22, s21, {1214 if m == "w4" else 3277}')
        k('s_lshr_b32 s22, s22, 16')
        k(f's_mul_i32 s23, s22, {KS}')
        k('s_sub_u32 s23, s21, s23')
        NT = 7 if m == 'w3' else 5
        k(f's_mul_i32 s45, s22, {216 if m == "w3" else 160}')
        k(f's_mul_i32 s46, s21, {NT * 1024}')
        k(f's_add_u32 s46, s46, {dict(w1=PW1, w2=PW2, w3=PW3, w4=PW4)[m]}')
        if m in ('w1', 'w3'):
            k('s_mul_i32 s47, s23, 2432')
            k(f's_mul_i32 s31, s22, {16 * NT}')
            k('s_add_u32 s47, s47, s31')
            k('s_lshl_b32 s47, s47, 2')
            k(f's_add_u32 s47, s47, {CSP + (2560 if m == "w3" else 0)}')
        if m == 'w1':
            k('s_lshl_b32 s40, s23, 5\ns_mov_b32 s41, 8')
        elif m in ('w2', 'w3'):
            k('s_mul_i32 s31, s23, 205\ns_lshr_b32 s31, s31, 10')
            k('s_mul_i32 s32, s31, 5\ns_sub_u32 s32, s23, s32')
            k('s_mul_i32 s40, s31, 160')
            k('s_lshr_b32 s33, s32, 1\ns_mul_i32 s33, s33, 80')
            k('s_and_b32 s34, s32, 1\ns_lshl_b32 s34, s34, 3')
            k('s_add_u32 s33, s33, s34')
            k('s_cmp_eq_u32 s32, 4')
            k('s_cselect_b32 s33, 16, s33')
            k('s_cselect_b32 s42, 80, 4')
            k('s_add_u32 s40, s40, s33')
            k('s_mov_b32 s41, 20')
        else:
            k('s_mul_i32 s31, s23, 43\ns_lshr_b32 s31, s31, 7')
            k('s_mul_i32 s32, s31, 3\ns_sub_u32 s32, s23, s32')
            k('s_mul_i32 s40, s31, 108')
            k('s_lshl_b32 s32, s32, 3')
            k('s_add_u32 s40, s40, s32')
            k('s_sub_u32 s33, s23, 48\ns_lshl_b32 s33, s33, 3')
            k('s_mul_i32 s34, s33, 28\ns_add_u32 s34, s34, 24')
            k('s_cmp_ge_u32 s23, 48')
            k('s_cselect_b32 s40, s34, s40')
            k('s_cselect_b32 s41, 56, 28')
            k('s_cselect_b32 s42, 28, 4')
            k('s_cselect_b32 s43, s33, 0')
            k('s_cselect_b32 s44, 24, 0')
        idx = {'w1': 8, 'w2': 10, 'w3': 12, 'w4': 14}[m]
        k(f's_mov_b32 s48, {idx}')
        k(f's_branch {L}_B{NT}')
        if i + 1 < len(mats): k.label(f'{L}_N{i}')
    for NT in sorted({7 if m == 'w3' else 5 for m in mats}):
        LPR = 2 * NT; P = 32 * NT; WP = 3456 if NT == 7 else 1280
        magic = {10: 6554, 14: 4682}[LPR]
        k.label(f'{L}_B{NT}')
        for j in range(NT):
            k(f'v_add_u32 v20, {64 * j}, v1')
            k(f'v_mul_u32_u24 v21, {magic}, v20')
            k('v_lshrrev_b32 v21, 16, v21')
            k(f'v_mad_i32_i24 v20, v21, {-LPR}, v20')
            k('v_lshrrev_b32 v22, 4, v21')
            k('v_bfe_u32 v23, v21, 2, 1')
            k('v_lshl_or_b32 v22, v22, 1, v23')
            k('v_bfe_u32 v23, v21, 3, 1')
            k('v_and_b32 v21, 3, v21')
            k('v_add_u32 v21, s40, v21')
            k('v_mad_u32_u24 v21, v22, s41, v21')
            k('v_mad_u32_u24 v21, v23, s42, v21')
            if NT == 5 and 'w4' in mats:
                k('v_lshl_add_u32 v22, v22, 1, v23')
                k('v_add_u32 v22, s43, v22')
                k('v_mul_u32_u24 v22, 43, v22')
                k('v_lshrrev_b32 v22, 7, v22')
                k('v_mad_u32_u24 v21, v22, s44, v21')
            k(f'v_mul_u32_u24 v21, {WP}, v21')
            k(f'v_lshl_add_u32 v{4 + j}, v20, 4, v21')
        k('v_lshrrev_b32 v2, 4, v1')
        k('v_bfe_u32 v20, v1, 2, 2')
        k('v_and_b32 v21, 1, v2')
        k('v_lshl_add_u32 v21, v21, 2, v20')
        k('v_lshrrev_b32 v22, 1, v2')
        k('v_lshl_add_u32 v21, v22, 4, v21')
        k(f'v_mul_u32_u24 v21, {P}, v21')
        k('v_and_b32 v22, 3, v1')
        k(f'v_mul_u32_u24 v23, {8 * NT}, v22')
        k('v_add3_u32 v15, v21, v23, s30')
        k('v_lshlrev_b32 v16, 4, v1')
        k(f'v_mul_u32_u24 v17, {16 * NT}, v2')
        for j in range(4): k(f'v_mov_b32 v{24 + j}, 0x3f803f80')
        k('s_waitcnt lgkmcnt(0)')
        if NT == 7:
            k('s_mov_b32 s8, s12\ns_mov_b32 s9, s13')
        else:
            k('s_cmp_eq_u32 s48, 10')
            k('s_cselect_b32 s8, s10, s8\ns_cselect_b32 s9, s11, s9')
            k('s_cmp_eq_u32 s48, 14')
            k('s_cselect_b32 s8, s14, s8\ns_cselect_b32 s9, s15, s9')
        k(f's_mov_b32 s10, {640 * 1280}')
        if NT == 7: k(f's_mov_b32 s10, {640 * 3456}')
        else: k(f's_cselect_b32 s10, {1728 * 1280}, s10')
        k('s_mov_b32 s11, 0x00020000')
        k('s_mov_b32 s24, s4\ns_mov_b32 s25, s5')
        k(f's_mov_b32 s26, {WS_END}\ns_mov_b32 s27, 0x00020000')
        for j in range(NT):
            k(f's_add_u32 m0, s30, {1024 * j}')
            k(f'buffer_load_dwordx4 v{4 + j}, s[8:11], s45 offen lds')
        k('s_add_u32 s31, s46, 4096')
        k('s_waitcnt vmcnt(0)')
        for t in range(NT):
            k(f'ds_read_b64_tr_b16 v[{28 + 4 * t}:{29 + 4 * t}], v15 offset:{8 * t}')
            k(f'ds_read_b64_tr_b16 v[{30 + 4 * t}:{31 + 4 * t}], v15 offset:{8 * t + 8 * P}')
        for t in range(NT):
            k(f's_waitcnt lgkmcnt({2 * (NT - 1 - t)})')
            k(f'buffer_store_dwordx4 v[{28 + 4 * t}:{31 + 4 * t}], v16, s[24:27], {"s46" if t < 4 else "s31"} offen offset:{1024 * (t % 4)}')
        k('s_cmp_eq_u32 s47, 0')
        k(f's_cbranch_scc1 {endlabel}')
        for t in range(NT):
            k(f'v_mfma_f32_16x16x32_bf16 v[{56 + 4 * t}:{59 + 4 * t}], v[{28 + 4 * t}:{31 + 4 * t}], v[24:27], 0')
        k('s_mov_b32 exec_lo, 0x00010001\ns_mov_b32 exec_hi, 0x00010001')
        for t in range(NT):
            k(f'buffer_store_dwordx4 v[{56 + 4 * t}:{59 + 4 * t}], v17, s[24:27], s47 offen offset:{16 * t}')
        k('s_endpgm')
    return (tot + 3) // 4

def gen_csred(k, L, wg0):
    k.label(L)
    k(f's_sub_u32 s21, s2, {wg0}')
    k('s_lshl_b32 s21, s21, 8')
    k('v_add_u32 v1, s21, v0')
    k('v_lshlrev_b32 v2, 2, v1')
    k(f'v_add_u32 v3, {CS1}, v2')
    k(f'v_add_u32 v4, {CS3 - 2560}, v2')
    k('v_cmp_gt_u32 vcc, 640, v1')
    k('v_cndmask_b32 v3, v4, v3, vcc')
    k('v_cmp_gt_u32 vcc, 2432, v1')
    k('s_waitcnt lgkmcnt(0)')
    k('s_mov_b32 s24, s4\ns_mov_b32 s25, s5')
    k(f's_mov_b32 s26, {WS_END}\ns_mov_b32 s27, 0x00020000')
    k(f's_mov_b32 s22, {CSP}')
    for b in range(20):
        k(f'buffer_load_dword v{8 + b}, v2, s[24:27], s22 offen')
        k(f's_add_u32 s22, s22, {2432 * 4}')
    for b in range(1, 20):
        k(f's_waitcnt vmcnt({19 - b})')
        k(f'v_add_f32 v8, v8, v{8 + b}')
    k('s_and_b64 exec, exec, vcc')
    k('buffer_store_dword v8, v3, s[24:27], 0 offen')
    k('s_endpgm')
    return 10
```

```python
from asmlib import *
from layout import *
from pack import *
import math

LOG2E = math.log2(math.e)
def hi16(x):
    u = f2u(x) & 0xFFFFFF00
    return struct.unpack('<f', struct.pack('<I', u))[0]
L_HI = hi16(LOG2E)
L_LO_LN2 = (LOG2E - L_HI) * math.log(2.0)

def wave_sum(k, v, sdst):
    k(f'v_add_f32 v{v}, v{v}, v{v} quad_perm:[1,0,3,2] row_mask:0xf bank_mask:0xf')
    k(f'v_add_f32 v{v}, v{v}, v{v} quad_perm:[2,3,0,1] row_mask:0xf bank_mask:0xf')
    k(f'v_add_f32 v{v}, v{v}, v{v} row_half_mirror row_mask:0xf bank_mask:0xf')
    k(f'v_add_f32 v{v}, v{v}, v{v} row_mirror row_mask:0xf bank_mask:0xf')
    k(f'v_add_f32 v{v}, v{v}, v{v} row_bcast:15 row_mask:0xa bank_mask:0xf')
    k(f'v_add_f32 v{v}, v{v}, v{v} row_bcast:31 row_mask:0xc bank_mask:0xf')
    k(f'v_readlane_b32 s{sdst}, v{v}, 63')

def exp_bf16(k, dst, src, t1, t2, sLhi, sLlo):
    k(f'v_lshlrev_b32 v{t1}, 16, v{src}')
    k(f'v_mul_f32 v{t2}, s{sLhi}, v{t1}')
    k(f'v_mul_f32 v{t1}, s{sLlo}, v{t1}')
    k(f'v_exp_f32 v{t2}, v{t2}')
    k(f'v_fma_f32 v{t2}, v{t2}, v{t1}, v{t2}')
    k(f'v_cvt_pk_bf16_f32 v{t2}, v{t2}, v{t2}')
    k(f'v_lshlrev_b32 v{dst}, 16, v{t2}')

N_LN = 320
N_CS = 120
N_KG = 640
TP = 272
TB = 41 * TP
KD = 2 * TB

def gen_s1():
    k = Kernel('s1_kernel', N_LN + N_CS + N_KG, 256, 28672)
    stamp(k, 0)
    k('s_load_dwordx2 s[4:5], s[0:1], 112')
    k(f's_cmp_lt_u32 s2, {N_LN}')
    k('s_cbranch_scc1 S1_LN')
    k(f's_cmp_lt_u32 s2, {N_LN + N_CS}')
    k('s_cbranch_scc1 S1_CS')
    k(f's_cmp_ge_u32 s2, {N_LN + N_CS + N_KG}')
    k('s_cbranch_scc1 S1_END')
    k('s_load_dwordx8 s[8:15], s[0:1], 8')
    k('s_load_dwordx2 s[16:17], s[0:1], 40')
    k(f's_sub_u32 s3, s2, {N_LN + N_CS}')
    k('v_and_b32 v1, 63, v0')
    k('v_lshrrev_b32 v2, 6, v0')
    k('v_readfirstlane_b32 s20, v2')
    k('s_lshl_b32 s21, s3, 8')
    k('v_lshl_add_u32 v3, v1, 1, s21')
    k('s_lshl_b32 s21, s3, 1')
    k('v_mov_b32 v4, s21')
    k('s_waitcnt lgkmcnt(0)')
    stamp(k, 1)
    k('global_load_ushort v5, v4, s[16:17]')
    for r in range(2):
        for j in range(4):
            k(f'global_load_ushort v{6 + 4 * r + j}, v3, s[{8 + 2 * j}:{9 + 2 * j}] offset:{128 * r}')
    k('s_mov_b32 s24, s4\ns_mov_b32 s25, s5')
    k(f's_mov_b32 s26, {WS_END}\ns_mov_b32 s27, 0x00020000')
    k('s_and_b32 s22, s20, 1')
    k('s_lshr_b32 s23, s20, 1')
    k('s_cmp_eq_u32 s22, 0')
    for i, (a, b) in enumerate(((0.0, 24.0), (1.0, 2.0), (1.0, 4.0), (1.0, 8.0), (2.0, 8.0))):
        k(f's_cselect_b32 s{30 + i}, {hexf(a)}, {hexf(b)}')
    k(f's_cselect_b32 s35, 0, {20 * TP}')
    k('s_cmp_eq_u32 s23, 0')
    k(f's_mov_b32 s36, {hexf(LOG2E)}\ns_cselect_b32 s36, s36, {hexf(16 * LOG2E)}')
    k(f's_mov_b32 s37, {hexf(0.5 / math.pi)}\ns_cselect_b32 s37, s37, {hexf(-8.0 / math.pi)}')
    k(f's_cselect_b32 s38, 0, {TB}')
    k('s_cselect_b64 s[40:41], 0, -1')
    k('s_add_u32 s35, s35, s38')
    k(f's_mov_b32 s42, {hexf(L_HI)}\ns_mov_b32 s43, {hexf(L_LO_LN2)}')
    k('v_lshlrev_b32 v20, 3, v0')
    k('v_sub_u32 v20, 2047, v20')
    for e in range(0, 8, 2):
        k(f'v_subrev_u32 v21, {e}, v20')
        k(f'v_subrev_u32 v22, {e + 1}, v20')
        k('v_cvt_f32_u32 v21, v21\nv_cvt_f32_u32 v22, v22')
        k('v_cvt_pk_bf16_f32 v21, v21, v22')
        k('v_and_b32 v22, 0xffff0000, v21')
        k('v_lshlrev_b32 v21, 16, v21')
        k('v_cvt_u32_f32 v21, v21\nv_cvt_u32_f32 v22, v22')
        k(f'v_lshlrev_b32 v{64 + e}, 1, v21')
        k(f'v_lshlrev_b32 v{65 + e}, 1, v22')
    k('v_and_b32 v20, 15, v1')
    k('v_lshrrev_b32 v21, 4, v1')
    k('s_lshl_b32 s44, 1, s20')
    k('s_lshl_b32 s45, s44, 3')
    k('s_cmp_eq_u32 s20, 0')
    k('s_cselect_b32 s45, 0, s45')
    k('v_lshlrev_b32 v22, s20, v20')
    k('v_add_u32 v23, s45, v22')
    k('v_min_u32 v23, 0x80, v23')
    for src, dst, base in ((23, 72, TB), (22, 73, 0)):
        k(f'v_lshrrev_b32 v24, 1, v{src}\nv_add_u32 v24, 8, v24')
        k(f'v_lshrrev_b32 v25, 2, v{src}\nv_add_u32 v25, 16, v25')
        k(f'v_lshrrev_b32 v26, 3, v{src}\nv_add_u32 v26, 24, v26')
        k(f'v_min3_u32 v24, v24, v25, v26')
        k(f'v_min_u32 v24, v24, v{src}')
        k(f'v_mul_u32_u24 v24, {TP}, v24')
        k(f'v_lshl_add_u32 v24, v21, 4, v24')
        k(f'v_add_u32 v{dst}, {base}, v24')
    k('v_lshlrev_b32 v24, 2, v21')
    k('v_lshlrev_b32 v24, s20, v24')
    k('v_add_u32 v24, s45, v24')
    k('v_lshl_add_u32 v74, v24, 4, v22')
    k('s_lshl_b32 s46, s44, 8')
    k('s_cmp_eq_u32 s20, 3')
    k('s_cselect_b32 s47, 1, 0')
    k('s_add_u32 s46, s46, s47')
    k('s_lshl_b32 s47, s44, 4')
    stamp(k, 2)
    k('s_waitcnt vmcnt(8)')
    stamp(k, 3)
    exp_bf16(k, 5, 5, 20, 21, 42, 43)
    for r in range(2):
        b = 6 + 4 * r
        k(f's_waitcnt vmcnt({4 - 4 * r})')
        exp_bf16(k, b, b, 20, 21, 42, 43)
        k(f'v_mul_f32 v{b}, v{b}, v5')
        k(f'v_mul_f32 v{b}, s36, v{b}')
        k(f'v_sub_f32 v{b}, 0, v{b}')
        for j in (1, 2, 3):
            k(f'v_lshlrev_b32 v{b + j}, 16, v{b + j}')
            k(f'v_mul_f32 v{b + j}, v{b + j}, v5')
        k(f'v_mul_f32 v{b + 1}, s37, v{b + 1}')
    k('v_add_f32 v20, |v8|, |v9|')
    k('v_add_f32 v21, |v12|, |v13|')
    k('v_add_f32 v20, v20, v21')
    wave_sum(k, 20, 48)
    k('s_lshr_b32 s48, s48, 23')
    k('s_add_u32 s48, s48, 1')
    k('s_max_u32 s48, s48, 20')
    k('s_min_u32 s48, s48, 254')
    k('s_sub_u32 s49, 269, s48')
    k('s_lshl_b32 s49, s49, 23')
    k('s_sub_u32 s50, s48, 14')
    k('s_lshl_b32 s50, s50, 23')
    for r in range(2):
        b = 6 + 4 * r
        k(f'v_mul_f32 v{b + 2}, s49, v{b + 2}')
        k(f'v_mul_f32 v{b + 3}, s49, v{b + 3}')
        k(f'v_cndmask_b32 v{b + 2}, 1.0, v{b + 2}, s[40:41]')
        k(f'v_cndmask_b32 v{b + 3}, 0, -v{b + 3}, s[40:41]')
    def seeds(r, base):
        b = 6 + 4 * r
        for i in range(5):
            k(f'v_mul_f32 v{20 + i}, s{30 + i}, v{b}')
            k(f'v_mul_f32 v{25 + i}, s{30 + i}, v{b + 1}')
        for i in range(5):
            k(f'v_exp_f32 v{20 + i}, v{20 + i}')
            k(f'v_fract_f32 v{25 + i}, v{25 + i}')
        for i in range(5):
            k(f'v_cos_f32 v{base + 2 * i}, v{25 + i}')
            k(f'v_sin_f32 v{base + 2 * i + 1}, v{25 + i}')
        for i in range(5):
            k(f'v_mul_f32 v{base + 2 * i}, v{base + 2 * i}, v{20 + i}')
            k(f'v_mul_f32 v{base + 2 * i + 1}, v{base + 2 * i + 1}, v{20 + i}')
        k(f'v_mul_f32 v20, v{base + 1}, v{b + 3}')
        k(f'v_mul_f32 v21, v{base + 1}, v{b + 2}')
        k(f'v_fma_f32 v{base + 1}, v{base}, v{b + 3}, v21')
        k(f'v_fma_f32 v{base}, v{base}, v{b + 2}, -v20')
    def steps(base, extra=None):
        k('s_mov_b32 m0, s35')
        k('s_cmp_lg_u32 s22, 0')
        lbl = f'S1_SKIP{base}'
        k(f's_cbranch_scc1 {lbl}')
        k(f'v_fma_mixlo_f16 v32, v{base}, 1.0, 0')
        k(f'v_fma_mixhi_f16 v32, v{base + 1}, 1.0, 0')
        k('ds_write_addtid_b32 v32 offset:0')
        k.label(lbl)
        cur = (base, base + 1); nxt = (30, 31)
        i = 1
        for seg, n in enumerate((4, 8, 4, 4)):
            mr = base + 2 + 2 * seg; mi = mr + 1
            for _ in range(n):
                p = 32 + (i & 3)
                k(f'v_mul_f32 v36, v{cur[1]}, v{mi}')
                k(f'v_mul_f32 v37, v{cur[1]}, v{mr}')
                k(f'v_fma_f32 v{nxt[0]}, v{cur[0]}, v{mr}, -v36')
                k(f'v_fma_f32 v{nxt[1]}, v{cur[0]}, v{mi}, v37')
                k(f'v_fma_mixlo_f16 v{p}, v{nxt[0]}, 1.0, 0')
                k(f'v_fma_mixhi_f16 v{p}, v{nxt[1]}, 1.0, 0')
                k(f'ds_write_addtid_b32 v{p} offset:{i * TP}')
                if extra and i in extra: k(extra[i])
                cur, nxt = nxt, cur
                i += 1
    def reads():
        for kk in range(4):
            k(f'ds_read_b128 v[{80 + 8 * kk}:{83 + 8 * kk}], v72 offset:{64 * kk}')
            k(f'ds_read_b128 v[{84 + 8 * kk}:{87 + 8 * kk}], v73 offset:{64 * kk}')
    def mf(kk, first):
        c = '0' if first else 'v[76:79]'
        return f'v_mfma_f32_16x16x32_f16 v[76:79], v[{80 + 8 * kk}:{83 + 8 * kk}], v[{84 + 8 * kk}:{87 + 8 * kk}], {c}'
    stamp(k, 4)
    seeds(0, 40)
    stamp(k, 5)
    steps(40)
    stamp(k, 6)
    seeds(1, 50)
    k('s_waitcnt lgkmcnt(0)\ns_barrier')
    reads()
    k('s_waitcnt lgkmcnt(0)\ns_barrier')
    stamp(k, 7)
    steps(50, {2: mf(0, True), 5: mf(1, False), 8: mf(2, False), 11: mf(3, False)})
    k('s_waitcnt lgkmcnt(0)\ns_barrier')
    reads()
    for kk in range(4):
        k(f's_waitcnt lgkmcnt({6 - 2 * kk})')
        k(mf(kk, False))
    stamp(k, 8)
    k('v_mov_b32 v28, 0x1010')
    for j in range(4):
        k(f'v_cmp_gt_u32 vcc, s46, v74')
        k(f'v_lshlrev_b32 v20, 1, v74')
        k(f'v_cndmask_b32 v20, v28, v20, vcc')
        k(f'v_cvt_f16_f32 v21, v{76 + j}')
        k(f'ds_write_b16 v20, v21 offset:{KD}')
        if j < 3: k('v_add_u32 v74, s47, v74')
    k('s_waitcnt lgkmcnt(0)\ns_barrier')
    for e in range(8):
        k(f'ds_read_u16 v{40 + e}, v{64 + e} offset:{KD}')
    k(f's_mul_i32 s21, s3, {KR_P}')
    k(f's_add_u32 s21, s21, {KR}')
    k('v_lshlrev_b32 v24, 4, v0')
    k('v_mov_b32 v28, 0\nv_mov_b32 v29, 0\nv_mov_b32 v30, 0\nv_mov_b32 v31, 0')
    k('s_waitcnt lgkmcnt(0)')
    for e in range(4): k(f'v_lshl_or_b32 v{20 + e}, v{41 + 2 * e}, 16, v{40 + 2 * e}')
    k('buffer_store_dwordx4 v[20:23], v24, s[24:27], s21 offen')
    k('v_cmp_gt_u32 vcc, 32, v0')
    k('s_and_saveexec_b64 s[52:53], vcc')
    k('s_add_u32 s21, s21, 4096')
    k('buffer_store_dwordx4 v[28:31], v24, s[24:27], s21 offen')
    k('v_cmp_gt_u32 vcc, 4, v0')
    k('s_and_b64 exec, exec, vcc')
    k(f's_mul_i32 s21, s3, {UT_P}')
    k(f's_add_u32 s21, s21, {UT}')
    k('buffer_store_dwordx4 v[28:31], v24, s[24:27], s21 offen')
    k('v_cmp_gt_u32 vcc, 1, v0')
    k('s_and_b64 exec, exec, vcc')
    k('s_lshl_b32 s21, s3, 2')
    k(f's_add_u32 s21, s21, {KINV}')
    k('v_mov_b32 v25, s50')
    k('buffer_store_dword v25, v24, s[24:27], s21 offen')
    stamp(k, 9)
    stamp_end(k, 10)
    k('s_endpgm')
    k.label('S1_LN')
    k('s_load_dwordx2 s[8:9], s[0:1], 0')
    k('s_and_b32 s20, s2, 63')
    k('s_lshr_b32 s21, s2, 6')
    k('v_lshrrev_b32 v1, 3, v0')
    k('v_and_b32 v2, 7, v0')
    k('s_lshl_b32 s22, s20, 5')
    k('v_add_u32 v3, s22, v1')
    k('v_mul_u32_u24 v3, 1280, v3')
    k('v_lshl_add_u32 v3, v2, 4, v3')
    k('s_lshl_b32 s23, s21, 8')
    k('s_waitcnt lgkmcnt(0)')
    stamp(k, 1)
    k('s_mov_b32 s10, 2621440\ns_mov_b32 s11, 0x00020000')
    k('s_mov_b32 s24, s4\ns_mov_b32 s25, s5')
    k(f's_mov_b32 s26, {WS_END}\ns_mov_b32 s27, 0x00020000')
    for i in range(10):
        k(f'buffer_load_dwordx4 v[{12 + 8 * i}:{15 + 8 * i}], v3, s[8:11], s23 offen')
        k('s_add_u32 s23, s23, 128')
        k('s_cmp_eq_u32 s23, 1280')
        k('s_cselect_b32 s23, 0, s23')
    k('v_and_b32 v4, 0x13, v1')
    k('v_bfe_u32 v5, v1, 2, 1')
    k('v_lshl_or_b32 v4, v5, 3, v4')
    k('v_bfe_u32 v5, v1, 3, 1')
    k('v_lshl_or_b32 v4, v5, 2, v4')
    k('v_mul_u32_u24 v4, 288, v4')
    k('v_lshl_add_u32 v4, v2, 4, v4')
    k('v_mov_b32 v88, 0\nv_mov_b32 v89, 0\nv_mov_b32 v90, 0\nv_mov_b32 v91, 0')
    stamp(k, 2)
    for i in range(10):
        k(f's_waitcnt vmcnt({9 - i})')
        b = 8 + 8 * i
        if i < 2: k(f'ds_write_b128 v4, v[{b + 4}:{b + 7}] offset:{9216 + 128 * i}')
        for j in range(4):
            k(f'v_lshlrev_b32 v{b + 2 * j}, 16, v{b + 4 + j}')
            if j < 3 or True:
                pass
            k(f'v_and_b32 v{b + 2 * j + 1}, 0xffff0000, v{b + 4 + j}')
        for j in range(8):
            k(f'v_add_f32 v{88 + (j & 3)}, v{88 + (j & 3)}, v{b + j}')
    k('v_add_f32 v88, v88, v89\nv_add_f32 v90, v90, v91\nv_add_f32 v88, v88, v90')
    def red8(v):
        k(f'v_add_f32 v{v}, v{v}, v{v} quad_perm:[1,0,3,2] row_mask:0xf bank_mask:0xf')
        k(f'v_add_f32 v{v}, v{v}, v{v} quad_perm:[2,3,0,1] row_mask:0xf bank_mask:0xf')
        k(f'v_add_f32 v{v}, v{v}, v{v} row_half_mirror row_mask:0xf bank_mask:0xf')
    red8(88)
    stamp(k, 3)
    k(f'v_mul_f32 v92, {hexf(1.0 / 640)}, v88')
    k('v_mov_b32 v88, 0\nv_mov_b32 v89, 0\nv_mov_b32 v90, 0\nv_mov_b32 v91, 0')
    for e in range(80):
        t = 94 + (e & 3)
        k(f'v_sub_f32 v{t}, v{8 + e}, v92')
        k(f'v_fma_f32 v{88 + (e & 3)}, v{t}, v{t}, v{88 + (e & 3)}')
    k('v_add_f32 v88, v88, v89\nv_add_f32 v90, v90, v91\nv_add_f32 v88, v88, v90')
    red8(88)
    k(f'v_mul_f32 v88, {hexf(1.0 / 640)}, v88')
    k('v_cvt_pk_bf16_f32 v88, v88, v92')
    k('v_and_b32 v92, 0xffff0000, v88')
    k('v_lshlrev_b32 v88, 16, v88')
    k(f'v_add_f32 v88, {hexf(1e-5)}, v88')
    k('v_cvt_pk_bf16_f32 v88, v88, v88')
    k('v_lshlrev_b32 v88, 16, v88')
    k('v_sqrt_f32 v88, v88')
    k('v_cvt_pk_bf16_f32 v88, v88, v88')
    k('v_lshlrev_b32 v88, 16, v88')
    k('v_rcp_f32 v93, v88')
    stamp(k, 4)
    for i in range(2):
        b = 8 + 8 * i
        for j in range(8): k(f'v_sub_f32 v{b + j}, v{b + j}, v92')
        for j in range(4): k(f'v_cvt_pk_bf16_f32 v{94 + j}, v{b + 2 * j}, v{b + 2 * j + 1}')
        for j in range(4):
            k(f'v_lshlrev_b32 v{b + 2 * j}, 16, v{94 + j}')
            k(f'v_and_b32 v{b + 2 * j + 1}, 0xffff0000, v{94 + j}')
        for j in range(8): k(f'v_mul_f32 v{b + j}, v{b + j}, v93')
        for j in range(4): k(f'v_cvt_pk_bf16_f32 v{94 + j}, v{b + 2 * j}, v{b + 2 * j + 1}')
        for j in range(4):
            k(f'v_lshlrev_b32 v{b + 2 * j}, 16, v{94 + j}')
            k(f'v_and_b32 v{b + 2 * j + 1}, 0xffff0000, v{94 + j}')
        for j in range(4): k(f'v_cvt_pkrtz_f16_f32 v{24 + 4 * i + j}, v{b + 2 * j}, v{b + 2 * j + 1}')
        k(f'ds_write_b128 v4, v[{24 + 4 * i}:{27 + 4 * i}] offset:{128 * i}')
    k('v_and_b32 v5, 63, v0')
    k('v_lshrrev_b32 v6, 4, v5')
    k('v_bfe_u32 v7, v5, 2, 2')
    k('v_and_b32 v32, 1, v6')
    k('v_lshl_add_u32 v7, v32, 2, v7')
    k('v_lshrrev_b32 v32, 1, v6')
    k('v_lshl_add_u32 v7, v32, 4, v7')
    k('v_mul_u32_u24 v7, 288, v7')
    k('v_and_b32 v32, 3, v5')
    k('v_lshl_add_u32 v7, v32, 3, v7')
    k('v_lshrrev_b32 v33, 6, v0')
    k('v_lshl_add_u32 v7, v33, 6, v7')
    k('v_and_b32 v34, 15, v5')
    k('v_lshl_add_u32 v34, v33, 5, v34')
    k('s_lshl_b32 s22, s21, 7')
    k('v_add_u32 v34, s22, v34')
    k(f'v_mul_u32_u24 v35, {UT_P}, v34')
    k('v_lshl_add_u32 v35, v6, 4, v35')
    k('v_lshlrev_b32 v36, 12, v34')
    k('v_lshl_add_u32 v36, v6, 4, v36')
    k('s_lshl_b32 s22, s20, 6')
    k(f's_add_u32 s28, s22, {UT + 64}')
    k(f's_add_u32 s29, s22, {XT}')
    k(f's_add_u32 s30, s28, {16 * UT_P}')
    k(f's_add_u32 s31, s29, {16 * 4096}')
    stamp(k, 5)
    k('s_waitcnt lgkmcnt(0)\ns_barrier')
    stamp(k, 6)
    for a in range(2):
        for s in range(2):
            d = 40 + 8 * a + 4 * s
            k(f'ds_read_b64_tr_b16 v[{d}:{d + 1}], v7 offset:{9216 * a + 32 * s}')
            k(f'ds_read_b64_tr_b16 v[{d + 2}:{d + 3}], v7 offset:{9216 * a + 32 * s + 8 * 288}')
    for a in range(2):
        for s in range(2):
            d = 40 + 8 * a + 4 * s
            k(f's_waitcnt lgkmcnt({6 - 4 * a - 2 * s})')
            k(f'buffer_store_dwordx4 v[{d}:{d + 3}], v{35 + a}, s[24:27], s{28 + a + 2 * s} offen')
    stamp(k, 7)
    stamp_end(k, 8)
    k('s_endpgm')
    n = gen_pack(k, 'S1_CS', N_LN, ['w1', 'w3'], 'S1_END')
    assert n == N_CS
    k.label('S1_END')
    k('s_endpgm')
    return k
```

```python
from asmlib import *
from layout import *
from pack import *

UB = 33280
def gen_s2():
    k = Kernel('s2_kernel', 640 + 158, 256, 37888)
    k('s_cmp_ge_u32 s2, 798')
    k('s_cbranch_scc1 S2_END')
    stamp(k, 0)
    k('s_load_dwordx2 s[4:5], s[0:1], 112')
    k('s_cmp_lt_u32 s2, 148')
    k('s_cbranch_scc1 S2_PK')
    k('s_cmp_lt_u32 s2, 158')
    k('s_cbranch_scc1 S2_CS')
    k('s_sub_u32 s2, s2, 158')
    k('s_load_dwordx2 s[6:7], s[0:1], 48')
    k('v_and_b32 v1, 63, v0')
    k('v_lshrrev_b32 v2, 6, v0')
    k('v_readfirstlane_b32 s20, v2')
    k(f's_mul_i32 s21, s2, {UT_P}')
    k(f's_add_u32 s21, s21, {UT + 34}')
    k(f's_mul_i32 s22, s2, {KR_P}')
    k(f's_add_u32 s22, s22, {KR - UB}')
    k('s_lshl_b32 s23, s20, 10')
    k('v_lshl_add_u32 v3, v2, 6, v1')
    k('s_mov_b32 s28, 4158')
    k('s_waitcnt lgkmcnt(0)')
    stamp(k, 7)
    k('s_mov_b32 s24, s4\ns_mov_b32 s25, s5')
    k(f's_mov_b32 s26, {WS_END}\ns_mov_b32 s27, 0x00020000')
    for i in range(10):
        if i == 9:
            k('s_cmp_lg_u32 s20, 0')
            k('s_cbranch_scc1 S2_DMA_DONE')
        k('v_mul_u32_u24 v4, 8066, v3')
        k('v_lshrrev_b32 v4, 21, v4')
        k('v_mul_u32_u24 v5, s28, v4')
        k('v_lshlrev_b32 v6, 4, v3')
        k('v_sub_u32 v5, v6, v5')
        k('v_add_u32 v5, s21, v5')
        if i >= 8:
            k('v_add_u32 v6, s22, v6')
            k('v_cmp_gt_u32 vcc, 8, v4')
            k('v_cndmask_b32 v5, v6, v5, vcc')
        k('s_mov_b32 m0, s23')
        k('s_add_u32 s23, s23, 4096')
        k('buffer_load_dwordx4 v5, s[24:27], 0 offen lds')
        k('v_add_u32 v3, 0x100, v3')
        if i in (0, 3, 6, 8): stamp(k, {0: 8, 3: 9, 6: 10, 8: 11}[i])
    k.label('S2_DMA_DONE')
    k('v_and_b32 v7, 15, v1')
    k('v_lshrrev_b32 v8, 4, v1')
    k('v_lshlrev_b32 v9, 5, v7')
    k('v_lshl_add_u32 v9, v8, 3, v9')
    k('s_lshl_b32 s29, s20, 10')
    k('v_add_u32 v9, s29, v9')
    k('s_lshl_b32 s30, s2, 12')
    k(f's_add_u32 s31, s30, {XT}')
    k(f's_add_u32 s32, s30, {HT}')
    k('buffer_load_dwordx2 v[10:11], v9, s[24:27], s31 offen')
    k('buffer_load_dwordx2 v[12:13], v9, s[24:27], s31 offen offset:512')
    k('s_lshl_b32 s33, s2, 1')
    k('v_mov_b32 v14, s33')
    k('global_load_ushort v14, v14, s[6:7]')
    k('s_lshl_b32 s33, s2, 2')
    k(f's_add_u32 s33, s33, {KINV}')
    k('v_mov_b32 v15, 0')
    k('buffer_load_dword v15, v15, s[24:27], s33 offen')
    k('v_and_b32 v16, 7, v7')
    k('v_mul_u32_u24 v16, 4160, v16')
    k('v_lshrrev_b32 v17, 3, v7')
    k('v_add_u32 v17, v17, v8')
    k('v_lshl_add_u32 v16, v17, 4, v16')
    k('s_lshl_b32 s29, s20, 7')
    k('v_add_u32 v16, s29, v16')
    k('v_lshlrev_b32 v17, 4, v8')
    k('v_lshlrev_b32 v18, 5, v7')
    k('v_sub_u32 v17, v17, v18')
    k(f's_add_u32 s29, s29, {UB + 480}')
    k('v_add_u32 v17, s29, v17')
    k(f'v_add_u32 v18, {7 * 4160 + 16}, v9')
    stamp(k, 1)
    k('s_waitcnt vmcnt(4)')
    stamp(k, 2)
    k('s_barrier')
    stamp(k, 3)
    FB = (64, 128); GB = (96, 160)
    ACC = 32
    def rd(r):
        for q in range(8):
            k(f'ds_read_b128 v[{FB[r] + 4 * q}:{FB[r] + 4 * q + 3}], v16 offset:{512 * q + 64 * r}')
            k(f'ds_read_b128 v[{GB[r] + 4 * q}:{GB[r] + 4 * q + 3}], v17 offset:{512 * (7 - q) + 64 * r}')
    rd(0)
    k('ds_read_b64 v[20:21], v18')
    k('ds_read_b64 v[22:23], v18 offset:512')
    rd(1)
    first = set()
    for r in range(2):
        for m in range(8):
            rem = (32 - 2 * (m + 1)) + 2 if r == 0 else (16 - 2 * (m + 1))
            k(f's_waitcnt lgkmcnt({min(rem, 15)})')
            prs = [(m, p) for p in range(m + 1) if m + p <= 7] + [(q, m) for q in range(m) if q + m <= 7]
            for (q, p) in prs:
                jt = q + p
                a = ACC + 4 * jt
                c = f'v[{a}:{a + 3}]' if jt in first else '0'
                first.add(jt)
                k(f'v_mfma_f32_16x16x32_f16 v[{a}:{a + 3}], v[{FB[r] + 4 * q}:{FB[r] + 4 * q + 3}], v[{GB[r] + 4 * p}:{GB[r] + 4 * p + 3}], {c}')
    stamp(k, 4)
    k('s_barrier')
    stamp(k, 5)
    k('v_lshlrev_b32 v24, 4, v1')
    k('s_lshl_b32 s29, s20, 10')
    k('v_add_u32 v24, s29, v24')
    for jt in range(8):
        lbl = f'S2_SK{jt}'
        k(f's_cmp_eq_u32 s20, {jt // 2}')
        k(f's_cbranch_scc1 {lbl}')
        k(f'ds_write_b128 v24, v[{ACC + 4 * jt}:{ACC + 4 * jt + 3}] offset:{4096 * jt}')
        k.label(lbl)
    for w in range(4):
        k(f's_cmp_lg_u32 s20, {w}')
        k(f's_cbranch_scc1 S2_MV{w}')
        for j in range(8): k(f'v_mov_b32 v{64 + j}, v{ACC + 8 * w + j}')
        k.label(f'S2_MV{w}')
    k('v_lshlrev_b32 v25, 4, v1')
    k('s_lshl_b32 s29, s20, 13')
    k('v_add_u32 v25, s29, v25')
    k('s_waitcnt lgkmcnt(0)\ns_barrier')
    stamp(k, 12)
    for o in range(1, 4):
        k(f's_add_u32 s29, s20, {o}')
        k('s_and_b32 s29, s29, 3')
        k('s_lshl_b32 s29, s29, 10')
        k(f'v_add_u32 v{26 + o}, s29, v25')
    for o in range(1, 4):
        for t in range(2):
            d = 72 + 8 * (o - 1) + 4 * t
            k(f'ds_read_b128 v[{d}:{d + 3}], v{26 + o} offset:{4096 * t}')
    k('s_waitcnt vmcnt(0)')
    k('v_lshlrev_b32 v14, 16, v14')
    for t in range(2):
        for j in range(2):
            s = 20 + 2 * t + j
            k(f'v_cvt_f32_f16 v{100 + 4 * t + 2 * j}, v{s}')
            k(f'v_cvt_f32_f16_sdwa v{101 + 4 * t + 2 * j}, v{s} dst_sel:DWORD dst_unused:UNUSED_PAD src0_sel:WORD_1')
    for j in range(8): k(f'v_mul_f32 v{100 + j}, v{100 + j}, v14')
    def rnd(base, tmp):
        for j in range(4): k(f'v_cvt_pk_bf16_f32 v{tmp + j}, v{base + 2 * j}, v{base + 2 * j + 1}')
        for j in range(4):
            k(f'v_lshlrev_b32 v{base + 2 * j}, 16, v{tmp + j}')
            k(f'v_and_b32 v{base + 2 * j + 1}, 0xffff0000, v{tmp + j}')
    rnd(100, 116)
    for j in range(4):
        k(f'v_lshlrev_b32 v{108 + 2 * j}, 16, v{10 + j}')
        k(f'v_and_b32 v{109 + 2 * j}, 0xffff0000, v{10 + j}')
    k('s_waitcnt lgkmcnt(0)')
    for j in range(8):
        k(f'v_add_f32 v{64 + j}, v{64 + j}, v{72 + j}')
        k(f'v_add_f32 v{80 + j}, v{80 + j}, v{88 + j}')
    for j in range(8): k(f'v_add_f32 v{64 + j}, v{64 + j}, v{80 + j}')
    for j in range(8): k(f'v_mul_f32 v{64 + j}, v{64 + j}, v15')
    rnd(64, 116)
    for j in range(8): k(f'v_add_f32 v{64 + j}, v{64 + j}, v{100 + j}')
    rnd(64, 116)
    for j in range(8): k(f'v_add_f32 v{64 + j}, v{64 + j}, v{108 + j}')
    for j in range(4): k(f'v_cvt_pk_bf16_f32 v{116 + j}, v{64 + 2 * j}, v{64 + 2 * j + 1}')
    k('buffer_store_dwordx2 v[116:117], v9, s[24:27], s32 offen')
    k('buffer_store_dwordx2 v[118:119], v9, s[24:27], s32 offen offset:512')
    stamp(k, 6)
    stamp_end(k, 13)
    k.label('S2_END')
    k('s_endpgm')
    assert gen_pack(k, 'S2_PK', 0, ['w2', 'w4'], 'S2_END') == 148
    gen_csred(k, 'S2_CS', 148)
    return k
```

```python
from asmlib import *
from layout import *
import math

LOG2E = math.log2(math.e)
GC0 = -2.0 * math.sqrt(2.0 / math.pi) * LOG2E
GC1 = GC0 * 0.044715

class VM:
    def __init__(self, k): self.k = k; self.n = 0; self.tags = {}
    def __call__(self, text, tag=None):
        self.k(text); self.n += 1
        if tag is not None: self.tags[tag] = self.n
    def cnt(self, tag): return min(63, self.n - self.tags[tag])
    def wait(self, tag, extra=''): self.k(f's_waitcnt vmcnt({self.cnt(tag)}){extra}')

def red4(k, v, t):
    k(f'v_mov_b32 v{t}, v{v}')
    k(f'v_permlane16_swap_b32 v{v}, v{t}')
    k(f'v_add_f32 v{v}, v{v}, v{t}')
    k(f'v_mov_b32 v{t}, v{v}')
    k(f'v_permlane32_swap_b32 v{v}, v{t}')
    k(f'v_add_f32 v{v}, v{v}, v{t}')

def rbf(k, v):
    k(f'v_cvt_pk_bf16_f32 v{v}, v{v}, v{v}')
    k(f'v_lshlrev_b32 v{v}, 16, v{v}')

def rstd(k, v):
    rbf(k, v)
    k(f'v_add_f32 v{v}, {hexf(1e-5)}, v{v}')
    rbf(k, v)
    k(f'v_sqrt_f32 v{v}, v{v}')
    rbf(k, v)
    k(f'v_rcp_f32 v{v}, v{v}')

def unpack(k, dst, src):
    k(f'v_lshlrev_b32 v{dst}, 16, v{src}')
    k(f'v_and_b32 v{dst + 1}, 0xffff0000, v{src}')

def pr(v): return f'v[{v}:{v + 1}]'

def gelu(k, b, n, T, k0, k1, si):
    P = range(n // 2)
    for j in P: k(f'v_pk_mul_f32 {pr(T + 2 * j)}, {pr(b + 2 * j)}, {pr(b + 2 * j)}')
    for j in P: k(f'v_pk_fma_f32 {pr(T + 2 * j)}, {pr(T + 2 * j)}, {pr(k1)}, {pr(k0)}')
    for j in P: k(f'v_pk_mul_f32 {pr(T + 2 * j)}, {pr(T + 2 * j)}, {pr(b + 2 * j)}')
    for j in range(n): k(f'v_exp_f32 v{T + j}, v{T + j}')
    for j in P: k(f'v_pk_fma_f32 {pr(T + 2 * j)}, {pr(T + 2 * j)}, {pr(si)}, {pr(si)}')
    for j in range(n): k(f'v_rcp_f32 v{T + j}, v{T + j}')
    for j in P: k(f'v_pk_mul_f32 {pr(b + 2 * j)}, {pr(b + 2 * j)}, {pr(T + 2 * j)}')
    for j in P: k(f'v_cvt_pk_bf16_f32 v{b + j}, v{b + 2 * j}, v{b + 2 * j + 1}')

def gconst(k, rs, k0, k1, si):
    k(f'v_mul_f32 v{k0}, {hexf(GC0)}, v{rs}')
    k(f'v_mul_f32 v{k1}, v{rs}, v{rs}')
    k(f'v_mul_f32 v{k1}, v{k1}, v{rs}')
    k(f'v_mul_f32 v{k1}, {hexf(GC1)}, v{k1}')
    k(f'v_rcp_f32 v{si}, v{rs}')
    k(f'v_mov_b32 v{k0 + 1}, v{k0}')
    k(f'v_mov_b32 v{k1 + 1}, v{k1}')
    k(f'v_mov_b32 v{si + 1}, v{si}')

class Rec:
    def __init__(self, k, vm): self.k = k; self.vm0 = vm; self.ops = []
    def __call__(self, s):
        for l in s.split('\n'):
            if l.strip(): self.ops.append(('i', l.strip(), None))
    def vm(self, text, tag=None): self.ops.append(('v', text, tag))
    def wait(self, tag): self.ops.append(('w', tag, None))
    def emit(self, n):
        while n > 0 and self.ops:
            kind, a, b = self.ops.pop(0)
            if kind == 'i': self.k(a)
            elif kind == 'v': self.vm0(a, b)
            else: self.vm0.wait(a)
            n -= 1

DBG = os.environ.get('DBG', '')
PF = int(os.environ.get('PF', '3'))
ACC = 32; WR = 88; EP = 128; HD = 148; MS = 158; AV = 170
LB = 57344

def gemm(mode):
    cfg = {
        's3': dict(MT=1, NT=5, KS=20, pw=PW1, lds=163840),
        's4': dict(MT=1, NT=5, KS=20, pw=PW2, lds=102400),
        's5': dict(MT=2, NT=7, KS=20, pw=PW3, lds=143360),
        's6': dict(MT=1, NT=5, KS=54, pw=PW4, lds=163840),
    }[mode]
    MT, NT, KS = cfg['MT'], cfg['NT'], cfg['KS']
    CH = 4096 * NT
    NCH = (KS + 3) // 4
    U = mode.upper()
    k = Kernel(mode + '_kernel', 256, 256, cfg['lds'])
    vm = VM(k)
    k('s_cmp_ge_u32 s2, 256')
    k(f's_cbranch_scc1 {U}_END')
    stamp(k, 0)
    k('s_load_dwordx2 s[4:5], s[0:1], 112')
    if mode == 's6': k('s_load_dwordx2 s[16:17], s[0:1], 96')
    k('v_and_b32 v1, 63, v0')
    k('v_lshrrev_b32 v2, 6, v0')
    k('v_readfirstlane_b32 s20, v2')
    k('v_lshrrev_b32 v2, 4, v1')
    k('v_and_b32 v3, 15, v1')
    if mode == 's5':
        k('s_and_b32 s21, s2, 15\ns_lshr_b32 s22, s2, 4')
    else:
        k('s_and_b32 s21, s2, 31\ns_lshr_b32 s22, s2, 5')
    if 'same' in DBG: k('s_mov_b32 s21, 0\ns_mov_b32 s22, 0')
    if 'mapd' in DBG: k('s_and_b32 s22, s2, 7\ns_lshr_b32 s21, s2, 3')
    if 'mapb' in DBG: k('s_and_b32 s22, s2, 1\ns_lshr_b32 s21, s2, 1\ns_and_b32 s21, s21, 31\ns_lshr_b32 s28, s2, 6\ns_lshl_b32 s28, s28, 1\ns_or_b32 s22, s22, s28')
    k('v_lshlrev_b32 v4, 4, v1')
    k(f'v_add_u32 v5, {LB}, v4')
    k(f'v_add_u32 v6, {2 * LB}, v4')
    k(f's_lshl_b32 s37, s21, {2 if MT == 1 else 3}')
    k(f's_lshl_b32 s28, s20, {0 if MT == 1 else 1}')
    k('s_add_u32 s37, s37, s28')
    k('s_lshl_b32 s23, s37, 4')
    k('s_mul_i32 s28, s37, 20480')
    k('v_add_u32 v18, s28, v4')
    k('s_lshr_b32 s38, s22, 1\ns_mul_i32 s38, s38, 5120')
    k('s_and_b32 s28, s22, 1')
    k('s_lshl_b32 s39, s28, 3\ns_add_u32 s39, s39, s38\ns_add_u32 s39, s39, 4096')
    k('s_lshl_b32 s28, s28, 11\ns_add_u32 s38, s38, s28')
    if mode == 's4':
        k('v_add_u32 v20, s23, v3')
        for i, sh in enumerate((-1, 1, -2, 2)):
            k(f'v_add_u32 v21, {sh}, v20')
            k('v_ashrrev_i32 v22, 4, v21')
            k('v_and_b32 v21, 15, v21')
            k('v_lshl_add_u32 v21, v2, 4, v21')
            k('v_lshlrev_b32 v21, 4, v21')
            k('s_movk_i32 s28, 20480')
            k(f'v_mad_i32_i24 v{11 + i}, v22, s28, v21')
    if mode == 's5':
        k('v_mov_b32 v11, v18')
        k('v_add_u32 v12, 20480, v18')
        k('s_mul_i32 s28, s37, 55296')
        k('v_add_u32 v18, s28, v4')
        k('v_add_u32 v19, 55296, v18')
        k('s_mul_i32 s38, s22, 3072')
        k('s_mul_i32 s29, s22, 3')
        k('v_add_u32 v20, s29, v2')
        k('v_lshrrev_b32 v21, 3, v20')
        k('v_lshlrev_b32 v21, 10, v21')
        k('v_bfe_u32 v22, v20, 1, 2')
        k('v_lshl_add_u32 v22, v22, 4, v3')
        k('v_lshl_add_u32 v21, v22, 4, v21')
        k('v_and_b32 v22, 1, v20')
        k('v_lshl_add_u32 v21, v22, 3, v21')
        k('s_add_u32 s28, s28, 49152')
        k('v_add_u32 v16, s28, v21')
        k('v_add_u32 v17, 55296, v16')
    if mode == 's6':
        k('s_mul_i32 s28, s37, 55296')
        k('v_add_u32 v11, s28, v4')
        k('v_add_u32 v20, s23, v3')
        k('v_mul_u32_u24 v19, 1280, v20')
        k('v_mul_u32_u24 v20, 40, v2')
        k('s_mul_i32 s28, s22, 160')
        k('v_add3_u32 v19, v19, v20, s28')
    k(f's_mul_i32 s29, s22, {KS * NT * 1024}')
    k(f's_mul_i32 s30, s20, {NT * 1024}')
    k('s_add_u32 s29, s29, s30')
    k(f's_add_u32 s29, s29, {cfg["pw"]}')
    if mode == 's3':
        k('v_bfe_u32 v20, v1, 2, 2')
        k('v_and_b32 v22, 3, v1')
        k('s_and_b32 s31, s20, 1')
        k('s_lshl_b32 s31, s31, 1')
        k('v_bfe_u32 v21, v1, 4, 1')
        k('v_or_b32 v21, s31, v21')
        k('v_bfe_u32 v23, v1, 1, 2')
        k('v_xor_b32 v21, v21, v23')
        k('v_lshlrev_b32 v21, 5, v21')
        k('v_and_b32 v23, 1, v1')
        k('v_lshl_or_b32 v21, v23, 4, v21')
        k('v_lshrrev_b32 v23, 3, v1')
        k('v_lshl_or_b32 v11, v23, 12, v21')
        k('v_lshrrev_b32 v21, 1, v20')
        k('v_and_b32 v23, 1, v2')
        k('v_lshl_or_b32 v21, v23, 1, v21')
        k('v_xor_b32 v21, s20, v21')
        k('v_lshlrev_b32 v21, 5, v21')
        k('v_lshl_or_b32 v21, v22, 3, v21')
        k('v_lshl_add_u32 v23, v2, 3, v20')
        k('v_lshl_or_b32 v12, v23, 7, v21')
        k(f'v_add_u32 v13, {LB}, v12')
        k('s_mul_i32 s31, s22, 80')
        k('v_mul_u32_u24 v21, 20, v2')
        k('v_add3_u32 v21, v21, v20, s31')
        for t in range(5):
            if t: k('v_add_u32 v21, 4, v21')
            k('v_bfe_u32 v23, v21, 1, 1')
            k('v_bfe_u32 v25, v21, 3, 1')
            k('v_lshl_or_b32 v23, v25, 1, v23')
            k('v_xor_b32 v23, s20, v23')
            k('v_lshlrev_b32 v23, 5, v23')
            k('v_lshl_or_b32 v23, v22, 3, v23')
            k(f'v_lshl_or_b32 v{26 + t}, v21, 7, v23')
        k('s_lshl_b32 s31, s21, 7')
        k('s_lshl_b32 s32, s20, 15')
        k('s_add_u32 s31, s31, s32')
        k(f's_add_u32 s31, s31, {HT}')
        k('s_lshl_b32 s32, s20, 10')
    k('s_waitcnt lgkmcnt(0)')
    stamp(k, 1)
    k('s_mov_b32 s24, s4\ns_mov_b32 s25, s5')
    k(f's_mov_b32 s26, {WS_END}\ns_mov_b32 s27, 0x00020000')
    if mode == 's4':
        k(f's_add_u32 s12, s4, {HB}\ns_addc_u32 s13, s5, 0')
        k(f's_mov_b32 s14, {2048 * 1280}\ns_mov_b32 s15, 0x00020000')
    if mode == 's6':
        k(f's_mov_b32 s18, {2048 * 1280}\ns_mov_b32 s19, 0x00020000')
    def slot(c):
        if mode == 's3': return 81920 + CH * c if c < 4 else 0
        if mode == 's6': return CH * (c % 8)
        return CH * c
    def areg(s, mt):
        if mode == 's3' or mode == 's4': i = AV + 4 * s; return f'v[{i}:{i + 3}]'
        if mode == 's5': i = 80 * mt + 4 * s
        else: i = 4 * (s % 32)
        return f'a[{i}:{i + 3}]'
    def dma_w(o, c):
        for j in range(NT):
            if j % 4 == 0:
                o(f's_add_u32 s33, s29, {CH * c + 1024 * j}')
                o(f's_add_u32 m0, s30, {slot(c) + 1024 * j}')
            if 'now' in DBG and j: continue
            o.vm(f'buffer_load_dwordx4 v4, s[24:27], s33 offen offset:{1024 * (j % 4)} lds', ('w', c))
    def load_a(o, c):
        if mode == 's3' or 'noa' in DBG: return
        base = {'s4': 0, 's5': X1, 's6': GG}[mode]
        o(f's_mov_b32 s34, {base + 4096 * c}')
        for s in range(4 * c, min(4 * c + 4, KS)):
            for mt in range(MT):
                if mode == 's4': o.vm(f'buffer_load_dwordx4 {areg(s, 0)}, v{11 + s // 5}, s[12:15], s34 offen offset:{1024 * (s % 4)}', ('w', c))
                else: o.vm(f'buffer_load_dwordx4 {areg(s, mt)}, v{11 + mt}, s[24:27], s34 offen offset:{1024 * (s % 4)}', ('w', c))
    def ld_tile(o, dst, base, tag):
        o(f's_add_u32 s36, s38, {base}')
        o.vm(f'buffer_load_dwordx4 v[{dst}:{dst + 3}], v18, s[24:27], s36 offen')
        o.vm(f'buffer_load_dwordx4 v[{dst + 4}:{dst + 7}], v18, s[24:27], s36 offen offset:1024')
        o(f's_add_u32 s36, s39, {base}')
        o.vm(f'buffer_load_dwordx2 v[{dst + 8}:{dst + 9}], v18, s[24:27], s36 offen', tag)
    def st_tile(o, src, base):
        o(f's_add_u32 s36, s38, {base}')
        o.vm(f'buffer_store_dwordx4 v[{src}:{src + 3}], v18, s[24:27], s36 offen')
        o.vm(f'buffer_store_dwordx4 v[{src + 4}:{src + 7}], v18, s[24:27], s36 offen offset:1024')
        o(f's_add_u32 s36, s39, {base}')
        o.vm(f'buffer_store_dwordx2 v[{src + 8}:{src + 9}], v18, s[24:27], s36 offen')
    def ld_cs(o, base):
        o(f's_mul_i32 s35, s22, {64 * NT}')
        o(f's_add_u32 s35, s35, {base}')
        o(f'v_mul_u32_u24 v7, {16 * NT}, v2')
        for t in range(NT):
            o.vm(f'buffer_load_dwordx4 v[{EP + 4 * t}:{EP + 4 * t + 3}], v7, s[24:27], s35 offen offset:{16 * t}', 'cs')
    def issue(c):
        o = Rec(k, vm)
        if c < NCH: dma_w(o, c); load_a(o, c)
        return o
    o = Rec(k, vm)
    if mode == 's3':
        for j in range(20):
            o(f's_add_u32 m0, s32, {4096 * j}')
            o.vm('buffer_load_dwordx4 v11, s[24:27], s31 offen lds', 'ht')
            o(f's_add_u32 s31, s31, {4 * 32768}')
        ld_cs(o, CS1)
    if mode == 's4': ld_tile(o, EP, XB, 'res')
    if mode == 's5':
        o('v_add_u32 v7, s23, v3')
        o('v_lshlrev_b32 v7, 6, v7')
        o('v_lshl_add_u32 v7, v2, 4, v7')
        o(f's_mov_b32 s36, {ST4}')
        o.vm(f'buffer_load_dwordx4 v[{MS}:{MS + 3}], v7, s[24:27], s36 offen')
        o.vm(f'buffer_load_dwordx4 v[{MS + 4}:{MS + 7}], v7, s[24:27], s36 offen offset:1024', 'st')
        ld_cs(o, CS3)
    if mode == 's6':
        ld_tile(o, EP, X1, 'res'); ld_tile(o, EP + 10, HR, 'res')
    o.emit(1000)
    for c in range(PF): issue(c).emit(1000)
    stamp(k, 2)
    T = WR
    ON = MS; AS = MS + 4; AQ = MS + 8
    fill = Rec(k, vm)
    init = mode != 's3'
    if mode == 's4':
        vm.wait('res')
        for j in range(10): unpack(k, ACC + 2 * j, EP + j)
    if mode == 's6':
        vm.wait('res')
        for j in range(10): unpack(k, ACC + 2 * j, EP + j)
        for j in range(10): unpack(k, 60 + 2 * j, EP + 10 + j)
        for j in range(10): k(f'v_pk_add_f32 {pr(ACC + 2 * j)}, {pr(ACC + 2 * j)}, {pr(60 + 2 * j)}')
    if mode == 's5':
        vm.wait('st')
        for mt in range(2):
            b = MS + 4 * mt
            k(f'v_add_f32 v{b}, v{b}, v{b + 2}\nv_add_f32 v{b + 1}, v{b + 1}, v{b + 3}')
            red4(k, b, b + 2); red4(k, b + 1, b + 3)
            k(f'v_mul_f32 v{b}, {hexf(1 / 640)}, v{b}')
            k(f'v_mul_f32 v{b + 1}, {hexf(1 / 640)}, v{b + 1}')
            k(f'v_fma_f32 v{b + 1}, -v{b}, v{b}, v{b + 1}')
            k(f'v_max_f32 v{b + 1}, 0, v{b + 1}')
            rbf(k, b); rstd(k, b + 1)
            gconst(k, b + 1, 20 + 6 * mt, 22 + 6 * mt, 24 + 6 * mt)
            k(f'v_sub_f32 v{b + 2}, 0, v{b}')
            k(f'v_sub_f32 v{b + 3}, 0, v{b}')
        vm.wait('cs')
        for mt in range(2):
            for j in range(14): k(f'v_pk_mul_f32 {pr(ACC + 28 * mt + 2 * j)}, {pr(EP + 2 * j)}, {pr(MS + 4 * mt + 2)}')
    if mode == 's3':
        for j in range(4): k(f'v_mov_b32 v{ON + j}, 0x3f803f80')
        vm.wait('ht')
        k('s_barrier')
        stamp(k, 3)
        def rd_a(s):
            off = 4096 * s; b = 12
            if off >= LB: off -= LB; b = 13
            k(f'ds_read_b64_tr_b16 v[{AV + 4 * s}:{AV + 4 * s + 1}], v{b} offset:{off}')
            k(f'ds_read_b64_tr_b16 v[{AV + 4 * s + 2}:{AV + 4 * s + 3}], v{b} offset:{off + 512}')
        for t in range(5): k(f'ds_read_b64_tr_b16 v[{HD + 2 * t}:{HD + 1 + 2 * t}], v{26 + t}')
        D = 6
        for s in range(D): rd_a(s)
        for s in range(20):
            if s + D < 20: rd_a(s + D)
            k(f's_waitcnt lgkmcnt({2 * min(D, 19 - s)})')
            a = areg(s, 0)
            k(f'v_mfma_f32_16x16x32_bf16 v[{AS}:{AS + 3}], v[{ON}:{ON + 3}], {a}, {f"v[{AS}:{AS + 3}]" if s else "0"}')
            k(f'v_mfma_f32_16x16x32_bf16 v[{AQ}:{AQ + 3}], {a}, {a}, {f"v[{AQ}:{AQ + 3}]" if s else "0"}')
        stamp(k, 4)
        f = fill
        st_tile(f, HD, HR)
        X = 60
        for j in range(10): unpack(f, X + 2 * j, HD + j)
        f('v_and_b32 v26, 3, v3')
        for j in (1, 2, 3): f(f'v_cmp_eq_u32 vcc, {j}, v26\nv_cndmask_b32 v{AQ}, v{AQ}, v{AQ + j}, vcc')
        f('v_lshrrev_b32 v26, 2, v3')
        f(f'v_cmp_eq_u32 vcc, v26, v2\nv_cndmask_b32 v{AQ}, 0, v{AQ}, vcc')
        red4(f, AQ, 26)
        f(f'v_mul_f32 v{AS}, {hexf(1 / 640)}, v{AS}')
        f(f'v_mul_f32 v{AQ}, {hexf(1 / 640)}, v{AQ}')
        f(f'v_fma_f32 v{AQ}, -v{AS}, v{AS}, v{AQ}')
        f(f'v_max_f32 v{AQ}, 0, v{AQ}')
        f(f'v_mov_b32 v{AS + 1}, v{AS}'); rbf(f, AS + 1)
        f(f'v_mov_b32 v{AQ + 1}, v{AQ}'); rstd(f, AQ + 1)
        f(f'v_sub_f32 v{AS + 2}, v{AS}, v{AS + 1}')
        f(f'v_mul_f32 v{AS + 2}, v{AS + 2}, v{AQ + 1}'); rbf(f, AS + 2)
        f(f'v_mul_f32 v{AQ + 2}, v{AQ}, v{AQ + 1}')
        f(f'v_mul_f32 v{AQ + 2}, v{AQ + 2}, v{AQ + 1}'); rstd(f, AQ + 2)
        f(f'v_mul_f32 v{AQ + 3}, v{AQ + 1}, v{AQ + 2}')
        gconst(f, AQ + 3, 20, 22, 24)
        f(f'v_rcp_f32 v28, v{AQ + 1}')
        f(f'v_fma_f32 v28, v{AS + 2}, v28, v{AS + 1}')
        f('v_sub_f32 v28, 0, v28')
        f('v_mov_b32 v29, v28')
        f(f'v_sub_f32 v26, 0, v{AS + 1}\nv_sub_f32 v27, 0, v{AS + 1}')
        f(f'v_mov_b32 v30, v{AQ + 1}\nv_mov_b32 v31, v{AQ + 1}')
        Y = 80
        for j in range(10): f(f'v_pk_add_f32 {pr(X + 2 * j)}, {pr(X + 2 * j)}, {pr(26)}')
        for j in range(8): f(f'v_cvt_pk_bf16_f32 v{Y + j}, v{X + 2 * j}, v{X + 2 * j + 1}')
        for j in range(8): unpack(f, X + 2 * j, Y + j)
        for j in range(8, 10): f(f'v_cvt_pk_bf16_f32 v{Y + j - 8}, v{X + 2 * j}, v{X + 2 * j + 1}')
        for j in range(8, 10): unpack(f, X + 2 * j, Y + j - 8)
        for j in range(10): f(f'v_pk_mul_f32 {pr(X + 2 * j)}, {pr(X + 2 * j)}, {pr(30)}')
        for j in range(10): f(f'v_cvt_pk_bf16_f32 v{X + j}, v{X + 2 * j}, v{X + 2 * j + 1}')
        st_tile(f, X, XB)
    items = [(s, t) for s in range(KS) for t in range(NT)]
    D = 9; R = 10
    st = dict(q=None, left=0)
    def rd_w(i):
        s, t = items[i]
        c = s // 4
        if s % 4 == 0 and t == 0:
            if st['q']: st['q'].emit(1000)
            vm.wait(('w', c))
            k('s_barrier')
            if c < 6: stamp(k, 5 + c)
            st['q'] = issue(c + PF); st['left'] = 4 * NT - 2
        off = slot(c) + ((s % 4) * NT + t) * 1024
        b = 4 + off // LB; off %= LB
        r = WR + 4 * (i % R)
        k(f'ds_read_b128 v[{r}:{r + 3}], v{b} offset:{off}')
    for i in range(D): rd_w(i)
    n = len(items)
    for i in range(n):
        if i + D < n: rd_w(i + D)
        k(f's_waitcnt lgkmcnt({min(D, n - 1 - i)})')
        s, t = items[i]
        r = WR + 4 * (i % R)
        for mt in range(MT):
            a = ACC + 4 * (mt * NT + t)
            k(f'v_mfma_f32_16x16x32_bf16 v[{a}:{a + 3}], v[{r}:{r + 3}], {areg(s, mt)}, {f"v[{a}:{a + 3}]" if s or init else "0"}')
        q = st['q']
        if q and q.ops:
            nv = sum(1 for o_ in q.ops if o_[0] == 'v')
            want = -(-nv // max(1, st['left']))
            while want > 0 and q.ops:
                if q.ops[0][0] == 'v': want -= 1
                q.emit(1)
        st['left'] -= 1
        if i >= 2: fill.emit(2)
    fill.emit(1000)
    stamp(k, 11)
    o = Rec(k, vm)
    if mode == 's3':
        vm.wait('cs')
        for j in range(10): k(f'v_pk_fma_f32 {pr(ACC + 2 * j)}, {pr(EP + 2 * j)}, {pr(28)}, {pr(ACC + 2 * j)}')
        gelu(k, ACC, 20, T, 20, 22, 24)
        st_tile(o, ACC, HB); o.emit(100)
    elif mode == 's4':
        X = 60
        for j in range(10): k(f'v_cvt_pk_bf16_f32 v{T + j}, v{ACC + 2 * j}, v{ACC + 2 * j + 1}')
        st_tile(o, T, X1); o.emit(100)
        for j in range(10): unpack(k, X + 2 * j, T + j)
        k(f'v_pk_add_f32 {pr(26)}, {pr(X)}, {pr(X + 2)}')
        k(f'v_pk_mul_f32 {pr(28)}, {pr(X)}, {pr(X)}')
        k(f'v_pk_fma_f32 {pr(28)}, {pr(X + 2)}, {pr(X + 2)}, {pr(28)}')
        for j in range(2, 10):
            k(f'v_pk_add_f32 {pr(26)}, {pr(26)}, {pr(X + 2 * j)}')
            k(f'v_pk_fma_f32 {pr(28)}, {pr(X + 2 * j)}, {pr(X + 2 * j)}, {pr(28)}')
        k('v_add_f32 v26, v26, v27\nv_add_f32 v27, v28, v29')
        red4(k, 26, 30); red4(k, 27, 31)
        k('s_lshl_b32 s36, s22, 3')
        k('s_lshl_b32 s35, s23, 6')
        k('s_add_u32 s36, s36, s35')
        k(f's_add_u32 s36, s36, {ST4}')
        k('v_lshlrev_b32 v28, 6, v3')
        k('s_mov_b64 exec, 0xffff')
        vm('buffer_store_dwordx2 v[26:27], v28, s[24:27], s36 offen')
        k('s_mov_b64 exec, -1')
    elif mode == 's5':
        k(f's_add_u32 s36, s38, {GG}')
        k(f's_mov_b32 s35, {GG}')
        k('v_cmp_gt_u32 vcc, 48, v1')
        for mt in range(2):
            A = ACC + 28 * mt
            gelu(k, A, 28, T, 20 + 6 * mt, 22 + 6 * mt, 24 + 6 * mt)
            for j in range(3):
                vm(f'buffer_store_dwordx4 v[{A + 4 * j}:{A + 4 * j + 3}], v{18 + mt}, s[24:27], s36 offen offset:{1024 * j}')
            k('s_mov_b64 exec, vcc')
            vm(f'buffer_store_dwordx2 v[{A + 12}:{A + 13}], v{16 + mt}, s[24:27], s35 offen')
            k('s_mov_b64 exec, -1')
    else:
        for j in range(10): k(f'v_cvt_pk_bf16_f32 v{T + j}, v{ACC + 2 * j}, v{ACC + 2 * j + 1}')
        vm(f'buffer_store_dwordx4 v[{T}:{T + 3}], v19, s[16:19], 0 offen')
        vm(f'buffer_store_dwordx4 v[{T + 4}:{T + 7}], v19, s[16:19], 0 offen offset:16')
        vm(f'buffer_store_dwordx2 v[{T + 8}:{T + 9}], v19, s[16:19], 0 offen offset:32')
    stamp(k, 12)
    stamp_end(k, 13)
    k.label(f'{U}_END')
    k('s_endpgm')
    return k

def gen_all():
    return [gemm(m) for m in ('s3', 's4', 's5', 's6')]
```
